```python
import torch

def _softmax(x, axis=-1):
    return torch.softmax(x, dim=axis)
def _gelu(x):
    return torch.nn.functional.gelu(x, approximate="tanh")
def _silu(x):
    return torch.nn.functional.silu(x)
def _sigmoid(x):
    return torch.sigmoid(x)
def _layernorm(x, axis=-1, eps=1e-5):
    m = x.mean(dim=axis, keepdim=True)
    v = x.var(dim=axis, keepdim=True, unbiased=False)
    return (x - m) / torch.sqrt(v + eps)
def _scatter_add(tgt, idx, src, axis=0):
    return tgt.clone().index_add_(axis, idx, src)
def _segment_sum(src, seg, n):
    out = torch.zeros((n,) + src.shape[1:], dtype=src.dtype)
    return out.index_add_(0, seg, src)
def _pad(x, pw):
    flat = tuple(v for pair in reversed(pw) for v in pair)
    return torch.nn.functional.pad(x, flat)

kernel_name = 'parallel_sum__linear_kernel_hedgehog__geglu_ffn__prompt'

def setup_inputs():

    _w = (lambda a: (lambda t: t.to(torch.bfloat16) if t.is_floating_point() else t)(torch.as_tensor(a)))
    def _A_setup():
        B, S, D, H = 1, 2048, 1024, 32
        Dh = D // H
        return {
            "x": _w((lambda *s: torch.randn(*s, dtype=torch.bfloat16) * 0.05)(B, S, D)),
            "wqkv": _w((lambda *s: torch.randn(*s, dtype=torch.bfloat16) * 0.8)(D, 3 * D)),
            "w_phi": _w((lambda *s: torch.randn(*s, dtype=torch.bfloat16) * 0.8)(H, Dh, Dh) * (Dh ** -0.5)),
            "wo": _w((lambda *s: torch.randn(*s, dtype=torch.bfloat16) * 0.2)(D, D)),
        }
    _A_in = _A_setup()

    def _B_setup():
        B, S, D, F = 1, 2048, 1024, 3584
        return {
            "x": _w((lambda *s: torch.randn(*s, dtype=torch.bfloat16) * 0.05)(B, S, D)),
            "w_gate": _w((lambda *s: torch.randn(*s, dtype=torch.bfloat16) * 0.05)(D, F)),
            "w_up": _w((lambda *s: torch.randn(*s, dtype=torch.bfloat16) * 0.05)(D, F)),
            "w_down": _w((lambda *s: torch.randn(*s, dtype=torch.bfloat16) * 0.05)(F, D)),
        }
    _B_in = _B_setup()

    return {
        "A_x": _A_in["x"],
        "A_wqkv": _A_in["wqkv"],
        "A_w_phi": _A_in["w_phi"],
        "A_wo": _A_in["wo"],
        "B_x": _B_in["x"],
        "B_w_gate": _B_in["w_gate"],
        "B_w_up": _B_in["w_up"],
        "B_w_down": _B_in["w_down"],
    }

def reference(A_x, A_wqkv, A_w_phi, A_wo, B_x, B_w_gate, B_w_up, B_w_down):
    def _A_ref(x, wqkv, w_phi, wo):
        B, S, D = x.shape
        H = 32; Dh = D // H
        qkv = (lambda x, *d: x.permute(*d))((x @ wqkv).reshape(B, S, 3, H, Dh), 2, 0, 3, 1, 4)
        q, k, v = qkv[0], qkv[1], qkv[2]
        pq = torch.einsum("bhsd,hdf->bhsf", q, w_phi)
        pk = torch.einsum("bhsd,hdf->bhsf", k, w_phi)
        phi_q = torch.concatenate([_softmax(pq, axis=-1), _softmax(-pq, axis=-1)], axis=-1)
        phi_k = torch.concatenate([_softmax(pk, axis=-1), _softmax(-pk, axis=-1)], axis=-1)
        kv = torch.einsum("bhsf,bhsd->bhfd", phi_k, v)
        z  = torch.einsum("bhsf->bhf", phi_k)
        num = torch.einsum("bhqf,bhfd->bhqd", phi_q, kv)
        den = torch.einsum("bhqf,bhf->bhq", phi_q, z)[..., None] + 1e-6
        o = num / den
        return (lambda x, *d: x.permute(*d))(o, 0, 2, 1, 3).reshape(B, S, D) @ wo

    def _B_ref(x, w_gate, w_up, w_down):
        return (_gelu(x @ w_gate) * (x @ w_up)) @ w_down

    x = A_x
    xn = _layernorm(x, axis=-1)
    return x + _A_ref(xn, A_wqkv, A_w_phi, A_wo) + _B_ref(xn, B_w_gate, B_w_up, B_w_down)
```

```python
import re

_REG = re.compile(r'^(-|abs\()?([vas])(?:(\d+)|\[(\d+):(\d+)\])\)?$')

def regs_of(tok):
    tok = tok.strip()
    if tok in ('vcc', 'vcc_lo', 'vcc_hi'):
        return {('x', 'vcc')}
    if tok in ('exec', 'exec_lo', 'exec_hi'):
        return {('x', 'exec')}
    if tok == 'm0':
        return {('x', 'm0')}
    m = _REG.match(tok)
    if not m:
        return set()
    k = m.group(2)
    if m.group(3) is not None:
        return {(k, int(m.group(3)))}
    return {(k, i) for i in range(int(m.group(4)), int(m.group(5)) + 1)}

TRANS = ('v_exp_f32', 'v_log_f32', 'v_rcp_f32', 'v_rsq_f32', 'v_sqrt_f32', 'v_sin_f32', 'v_cos_f32')

class Ins:
    def __init__(self, text):
        self.text = text
        t = text.split(';')[0].strip()
        self.is_label = t.endswith(':')
        self.is_dir = t.startswith('.') and not self.is_label
        self.empty = (t == '')
        self.mn = ''
        self.defs = set(); self.uses = set()
        self.A = self.B = self.C = set()
        self.store_data = set()
        if self.is_label or self.is_dir or self.empty:
            return
        parts = t.split(None, 1)
        self.mn = mn = parts[0]
        rest = parts[1] if len(parts) > 1 else ''
        ops = []; cur = ''; depth = 0
        for ch in rest:
            if ch in '[(':
                depth += 1
            if ch in '])':
                depth -= 1
            if ch == ',' and depth == 0:
                ops.append(cur.strip()); cur = ''
            else:
                cur += ch
        if cur.strip():
            ops.append(cur.strip())
        mods = ''
        if ops:
            lp = ops[-1].split(None, 1)
            ops[-1] = lp[0]
            mods = lp[1] if len(lp) > 1 else ''
        self.ops = ops; self.mods = mods
        R = [regs_of(o) for o in ops]
        self.mfma = mn.startswith('v_mfma')
        self.valu = mn.startswith('v_') and not self.mfma
        self.salu = mn.startswith('s_')
        self.vmem = mn.startswith(('buffer_', 'global_'))
        self.ds = mn.startswith('ds_')
        self.trans = mn.startswith(TRANS)
        self.dpp = ('_dpp' in mn) or ('quad_perm' in mods) or ('row_' in mods)
        self.permlane = mn.startswith('v_permlane')
        self.rdlane = mn.startswith(('v_readlane', 'v_readfirstlane'))
        self.ldsdma = self.vmem and (' lds' in (' ' + mods) or 'load_lds' in mn)
        U = lambda idx: set().union(*[R[i] for i in idx if i < len(R)]) if idx else set()
        n = len(R)
        if self.mfma:
            self.defs = R[0]; self.A = R[1]; self.B = R[2]; self.C = R[3]
            self.uses = self.A | self.B | self.C
            self.passes = 8 if '32x32' in mn else 4
        elif self.valu:
            if (self.permlane and 'swap' in mn) or mn.startswith('v_swap'):
                self.defs = R[0] | R[1]; self.uses = R[0] | R[1]
            elif mn.startswith(('v_add_co', 'v_sub_co', 'v_addc_co', 'v_subb_co')):
                self.defs = R[0] | R[1]; self.uses = U(range(2, n))
            elif mn.startswith('v_nop'):
                pass
            else:
                self.defs = R[0]; self.uses = U(range(1, n))
                if mn.startswith(('v_fmac', 'v_mac', 'v_dot2c', 'v_writelane')):
                    self.uses |= R[0]
                if mn.startswith('v_cndmask') and n == 3:
                    self.uses |= {('x', 'vcc')}
                if mn.startswith('v_cmpx'):
                    self.defs |= {('x', 'exec')}
        elif self.ds:
            if mn.startswith(('ds_read', 'ds_bpermute', 'ds_permute', 'ds_swizzle')):
                self.defs = R[0]; self.uses = U(range(1, n))
            else:
                self.uses = U(range(n))
        elif self.vmem:
            if self.ldsdma:
                self.uses = U(range(n)) | {('x', 'm0')}
            elif '_load' in mn:
                self.defs = R[0]; self.uses = U(range(1, n))
            elif 'atomic' in mn:
                self.uses = U(range(n))
                if 'sc0' in mods:
                    self.defs = R[0]
            elif '_store' in mn:
                self.uses = U(range(n))
                if 'x4' in mn or 'x3' in mn:
                    self.store_data = R[0] if mn.startswith('buffer') else R[1]
            else:
                self.uses = U(range(n))
        elif self.salu:
            if mn.startswith(('s_cmp', 's_cbranch', 's_branch', 's_waitcnt', 's_barrier', 's_nop', 's_endpgm',
                              's_setprio', 's_sleep', 's_bitcmp')):
                self.uses = U(range(n))
            else:
                self.defs = R[0] if n else set(); self.uses = U(range(1, n))
                if 'saveexec' in mn:
                    self.defs = self.defs | {('x', 'exec')}

    def slots(self):
        if self.is_label or self.is_dir or self.empty:
            return 0
        if self.mn == 's_nop':
            return int(self.ops[0], 0) + 1
        return 1

def vg(s):
    return {r for r in s if r[0] in 'va'}
def sg(s):
    return {r for r in s if r[0] == 's' or r == ('x', 'vcc')}

def need(p, c):
    n = 0
    if p.valu:
        w = vg(p.defs)
        if c.mfma and (w & c.uses): n = max(n, 2)
        if c.valu and p.trans and not c.trans and (w & (c.uses)): n = max(n, 1)
        if c.valu and (c.permlane or c.dpp) and (w & c.uses): n = max(n, 2)
        if c.valu and c.rdlane and (w & c.uses): n = max(n, 1)
        sw = sg(p.defs)
        if sw:
            if c.valu and (sw & c.uses): n = max(n, 4 if c.rdlane else 2)
            if c.vmem and (sw & c.uses): n = max(n, 5)
            if c.salu and (sw & c.uses): n = max(n, 1)
        if ('x', 'exec') in p.defs:
            n = max(n, 5)
    if p.mfma:
        big = 12 if p.passes == 8 else 8
        if c.mfma:
            if p.defs & (c.A | c.B): n = max(n, big)
            if (p.defs & c.C) and not (p.defs == c.C and p.passes == c.passes): n = max(n, big - 2)
            if (p.defs & c.defs) and not (p.defs == c.defs and p.defs == c.C): n = max(n, big)
        elif c.valu or c.vmem or c.ds:
            if p.defs & (c.uses | c.defs): n = max(n, big)
            if c.valu and (p.C & c.defs): n = max(n, 7 if p.passes == 8 else 3)
    if p.salu and ('x', 'm0') in p.defs and c.ldsdma: n = max(n, 1)
    if p.store_data and (p.store_data & c.defs):
        n = max(n, 2 if (c.valu or c.mfma) else 1)
    return n

class Asm:
    def __init__(self):
        self.L = []
    def __call__(self, *texts):
        for t in texts:
            for ln in t.split('\n'):
                self.L.append(ln.strip())
    def extend(self, other):
        self.L.extend(other.L)
    def finish(self, report=False):
        out = []
        ins_count = 0
        for t in self.L:
            c = Ins(t)
            if c.mn and c.mn != 's_nop':
                dist = 0; req = 0
                for p in reversed(out):
                    if dist >= 20: break
                    if p.mn:
                        r = need(p, c) if p.mn != 's_nop' else 0
                        if r > dist:
                            req = max(req, r - dist)
                    dist += p.slots()
                while req > 0:
                    k = min(req, 16)
                    out.append(Ins('s_nop %d' % (k - 1)))
                    if report: print('nop %d before: %s' % (k, t))
                    req -= k
            out.append(c)
        return '\n'.join(('' if (i.is_label or i.is_dir) else '    ') + i.text for i in out) + '\n'

def check_loop(body_lines):
    a = Asm(); a.L = list(body_lines); one = a.finish().count('\n')
    b = Asm(); b.L = list(body_lines) + list(body_lines); two = b.finish().count('\n')
    assert two == 2 * one, 'loop back-edge hazard'
```

```python
import sys, struct
from asmlib import Asm, check_loop

NAME = 'parallel_sum__linear_kernel_hedgehog__geglu_ffn__prompt'
def f2u(x): return struct.unpack('<I', struct.pack('<f', x))[0]
def hx(x): return '0x%x' % x

XN_OFF = 0
ACT_OFF = 0x400000
ACT_MT = 288 * 4096
QF_OFF = 0x1600000
KV_OFF = 0x1A00000
KV_HEAD = 2112 * 4
KV_SIZE = 32 * KV_HEAD
LOG2E = 1.4426950408889634

def srd(a, d, lo, hi, size, off=0):
    if off:
        a(f's_add_u32 s{d}, s{lo}, {hx(off)}', f's_addc_u32 s{d+1}, s{hi}, 0')
    else:
        a(f's_mov_b32 s{d}, s{lo}', f's_mov_b32 s{d+1}, s{hi}')
    a(f's_and_b32 s{d+1}, s{d+1}, 0xffff')
    a(f's_mov_b32 s{d+2}, {hx(size)}', f's_mov_b32 s{d+3}, 0x20000')

def header(a, name):
    a('.text', f'.globl {name}', '.p2align 8', f'.type {name},@function', f'{name}:')

def descriptor(name, vgpr, accum, sgpr=96):
    return f'''.section .rodata,"a"
.p2align 6
.amdhsa_kernel {name}
  .amdhsa_next_free_vgpr {vgpr}
  .amdhsa_next_free_sgpr {sgpr}
  .amdhsa_accum_offset {accum}
  .amdhsa_group_segment_fixed_size 0
  .amdhsa_kernarg_size 88
  .amdhsa_user_sgpr_count 2
  .amdhsa_user_sgpr_kernarg_segment_ptr 1
  .amdhsa_system_sgpr_workgroup_id_x 1
.end_amdhsa_kernel
'''

def k1():
    a = Asm(); header(a, 'ln_kernel')
    a('s_cmp_ge_u32 s2, 256', 's_cbranch_scc1 L1_done')
    a('s_load_dwordx2 s[4:5], s[0:1], 0', 's_load_dwordx2 s[6:7], s[0:1], 80')
    a('v_and_b32 v1, 63, v0',
      'v_lshrrev_b32 v2, 6, v0',
      'v_lshrrev_b32 v3, 3, v1',
      'v_and_b32 v12, 7, v1',
      's_lshl_b32 s3, s2, 14',
      'v_lshlrev_b32 v13, 11, v3',
      'v_lshl_add_u32 v13, v2, 8, v13',
      'v_lshl_add_u32 v13, v12, 4, v13')
    a('s_waitcnt lgkmcnt(0)')
    srd(a, 8, 4, 5, 0x400000)
    a('buffer_load_dwordx4 v[4:7], v13, s[8:11], s3 offen',
      'buffer_load_dwordx4 v[8:11], v13, s[8:11], s3 offen offset:128')
    srd(a, 12, 6, 7, 0x400000, XN_OFF)
    srd(a, 16, 6, 7, KV_SIZE, KV_OFF)
    a('v_mov_b32 v32, 0', 'v_mov_b32 v33, 0', 'v_mov_b32 v34, 0', 'v_mov_b32 v35, 0',
      's_mul_i32 s20, s2, 1056',
      'v_lshlrev_b32 v14, 4, v0',
      'v_cmp_gt_u32 vcc, 66, v0',
      's_and_saveexec_b64 s[22:23], vcc',
      's_cbranch_execz L1_nz',
      'buffer_store_dwordx4 v[32:35], v14, s[16:19], s20 offen',
      'L1_nz:',
      's_mov_b64 exec, s[22:23]')
    a('s_and_b32 s21, s2, 3', 's_lshl_b32 s21, s21, 3',
      'v_add_u32 v14, s21, v3',
      'v_bfe_u32 v15, v14, 2, 2',
      'v_and_b32 v36, 3, v12',
      'v_xor_b32 v15, v15, v36',
      'v_lshlrev_b32 v15, 4, v15',
      'v_lshl_add_u32 v15, v14, 6, v15',
      'v_lshrrev_b32 v36, 2, v12',
      'v_lshl_add_u32 v36, v2, 2, v36',
      'v_lshl_add_u32 v15, v36, 14, v15',
      's_lshr_b32 s24, s2, 5', 's_lshl_b32 s24, s24, 19',
      's_bfe_u32 s25, s2, 0x30002', 's_lshl_b32 s25, s25, 11',
      's_add_u32 s24, s24, s25', 's_add_u32 s25, s24, 0x8000')
    a('v_lshlrev_b32 v37, 5, v3', 'v_lshl_add_u32 v38, v2, 2, v37')
    a('s_waitcnt vmcnt(0)')
    for i in range(8):
        a(f'v_lshlrev_b32 v{16+2*i}, 16, v{4+i}', f'v_and_b32 v{17+2*i}, 0xffff0000, v{4+i}')
    def red8(r):
        a(f'v_add_f32_dpp v{r}, v{r}, v{r} quad_perm:[1,0,3,2] row_mask:0xf bank_mask:0xf',
          f'v_add_f32_dpp v{r}, v{r}, v{r} quad_perm:[2,3,0,1] row_mask:0xf bank_mask:0xf',
          f'v_add_f32_dpp v{r}, v{r}, v{r} row_half_mirror row_mask:0xf bank_mask:0xf')
    def cross(r, off):
        a(f'ds_write_b32 v38, v{r} offset:{off}', 's_waitcnt lgkmcnt(0)', 's_barrier',
          f'ds_read_b128 v[40:43], v37 offset:{off}', f'ds_read_b128 v[44:47], v37 offset:{off+16}',
          's_waitcnt lgkmcnt(0)',
          'v_pk_add_f32 v[40:41], v[40:41], v[42:43]', 'v_pk_add_f32 v[44:45], v[44:45], v[46:47]',
          'v_pk_add_f32 v[40:41], v[40:41], v[44:45]', f'v_add_f32 v{r}, v40, v41',
          f'v_mul_f32 v{r}, {hx(f2u(1.0/1024))}, v{r}')
    a('v_pk_add_f32 v[40:41], v[16:17], v[18:19]', 'v_pk_add_f32 v[42:43], v[20:21], v[22:23]',
      'v_pk_add_f32 v[44:45], v[24:25], v[26:27]', 'v_pk_add_f32 v[46:47], v[28:29], v[30:31]',
      'v_pk_add_f32 v[40:41], v[40:41], v[42:43]', 'v_pk_add_f32 v[44:45], v[44:45], v[46:47]',
      'v_pk_add_f32 v[40:41], v[40:41], v[44:45]', 'v_add_f32 v39, v40, v41')
    red8(39); cross(39, 0)
    a('v_mov_b32 v48, 0', 'v_mov_b32 v49, 0')
    for i in range(8):
        a(f'v_pk_add_f32 v[40:41], v[{16+2*i}:{17+2*i}], v[38:39] op_sel:[0,1] op_sel_hi:[1,1] neg_lo:[0,1] neg_hi:[0,1]',
          'v_pk_fma_f32 v[48:49], v[40:41], v[40:41], v[48:49]')
    a('v_add_f32 v48, v48, v49')
    red8(48); cross(48, 256)
    def rbf(r):
        a(f'v_cvt_pk_bf16_f32 v{r}, v{r}, v{r}', f'v_and_b32 v{r}, 0xffff0000, v{r}')
    rbf(39); rbf(48)
    a(f'v_add_f32 v48, {hx(f2u(1e-5))}, v48'); rbf(48)
    a('v_sqrt_f32 v48, v48'); rbf(48)
    a('v_rcp_f32 v48, v48')
    for i in range(8):
        a(f'v_pk_add_f32 v[40:41], v[{16+2*i}:{17+2*i}], v[38:39] op_sel:[0,1] op_sel_hi:[1,1] neg_lo:[0,1] neg_hi:[0,1]',
          'v_cvt_pk_bf16_f32 v42, v40, v41',
          'v_lshlrev_b32 v40, 16, v42', 'v_and_b32 v41, 0xffff0000, v42',
          'v_pk_mul_f32 v[40:41], v[40:41], v[48:49] op_sel_hi:[1,0]',
          f'v_cvt_pk_bf16_f32 v{4+i}, v40, v41')
    a('buffer_store_dwordx4 v[4:7], v15, s[12:15], s24 offen',
      'buffer_store_dwordx4 v[8:11], v15, s[12:15], s25 offen')
    a('L1_done:', 's_endpgm')
    return a.finish(), descriptor('ln_kernel', 56, 56, 32)

def softmax_pair(a, P, E, T, OP, ON, sL):
    for i in range(8):
        a(f'v_cvt_pk_bf16_f32 v{T}, v{P+2*i}, v{P+2*i+1}',
          f'v_lshlrev_b32 v{P+2*i}, 16, v{T}', f'v_and_b32 v{P+2*i+1}, 0xffff0000, v{T}')
    mx, mn, t0, t1 = T, T + 2, T + 4, T + 5
    a(f'v_max3_f32 v{mx}, v{P}, v{P+1}, v{P+2}', f'v_min3_f32 v{mn}, v{P}, v{P+1}, v{P+2}')
    for i in range(3, 15, 2):
        a(f'v_max3_f32 v{mx}, v{mx}, v{P+i}, v{P+i+1}', f'v_min3_f32 v{mn}, v{mn}, v{P+i}, v{P+i+1}')
    a(f'v_max_f32 v{mx}, v{mx}, v{P+15}', f'v_min_f32 v{mn}, v{mn}, v{P+15}')
    a(f'v_mov_b32 v{t0}, v{mx}', f'v_mov_b32 v{t1}, v{mn}',
      f'v_permlane32_swap_b32 v{mx}, v{t0}', f'v_permlane32_swap_b32 v{mn}, v{t1}',
      f'v_max_f32 v{mx}, v{mx}, v{t0}', f'v_min_f32 v{mn}, v{mn}, v{t1}',
      f'v_mul_f32 v{mx}, s{sL}, v{mx}', f'v_mul_f32 v{mn}, s{sL}, v{mn}')
    for i in range(8):
        a(f'v_pk_fma_f32 v[{E+2*i}:{E+2*i+1}], v[{P+2*i}:{P+2*i+1}], s[{sL}:{sL+1}], v[{mx}:{mx+1}] op_sel_hi:[1,1,0] neg_lo:[0,0,1] neg_hi:[0,0,1]',
          f'v_pk_fma_f32 v[{P+2*i}:{P+2*i+1}], v[{P+2*i}:{P+2*i+1}], s[{sL}:{sL+1}], v[{mn}:{mn+1}] op_sel_hi:[1,1,0] neg_lo:[1,0,0] neg_hi:[1,0,0]')
    for i in range(16):
        a(f'v_exp_f32 v{E+i}, v{E+i}', f'v_exp_f32 v{P+i}, v{P+i}')
    sp, sn = T, T + 2
    a(f'v_pk_add_f32 v[{sp}:{sp+1}], v[{E}:{E+1}], v[{E+2}:{E+3}]', f'v_pk_add_f32 v[{sn}:{sn+1}], v[{P}:{P+1}], v[{P+2}:{P+3}]')
    for i in range(2, 8):
        a(f'v_pk_add_f32 v[{sp}:{sp+1}], v[{sp}:{sp+1}], v[{E+2*i}:{E+2*i+1}]',
          f'v_pk_add_f32 v[{sn}:{sn+1}], v[{sn}:{sn+1}], v[{P+2*i}:{P+2*i+1}]')
    a(f'v_add_f32 v{sp}, v{sp}, v{sp+1}', f'v_add_f32 v{sn}, v{sn}, v{sn+1}',
      f'v_mov_b32 v{t0}, v{sp}', f'v_mov_b32 v{t1}, v{sn}',
      f'v_permlane32_swap_b32 v{sp}, v{t0}', f'v_permlane32_swap_b32 v{sn}, v{t1}',
      f'v_add_f32 v{sp}, v{sp}, v{t0}', f'v_add_f32 v{sn}, v{sn}, v{t1}',
      f'v_rcp_f32 v{sp}, v{sp}', f'v_rcp_f32 v{sn}, v{sn}')
    for i in range(8):
        a(f'v_pk_mul_f32 v[{E+2*i}:{E+2*i+1}], v[{E+2*i}:{E+2*i+1}], v[{sp}:{sp+1}] op_sel_hi:[1,0]',
          f'v_pk_mul_f32 v[{P+2*i}:{P+2*i+1}], v[{P+2*i}:{P+2*i+1}], v[{sn}:{sn+1}] op_sel_hi:[1,0]')
    for i in range(8):
        a(f'v_cvt_pk_bf16_f32 v{OP+i}, v{E+2*i}, v{E+2*i+1}', f'v_cvt_pk_bf16_f32 v{ON+i}, v{P+2*i}, v{P+2*i+1}')

def geglu(a, G, T, O, sC1, vC0):
    for i in range(4):
        g = G + 2 * i; t = T + 2 * i
        a(f'v_pk_mul_f32 v[{t}:{t+1}], v[{g}:{g+1}], v[{g}:{g+1}]')
    for i in range(4):
        t = T + 2 * i
        a(f'v_pk_fma_f32 v[{t}:{t+1}], v[{t}:{t+1}], s[{sC1}:{sC1+1}], v[{vC0}:{vC0+1}]')
    for i in range(4):
        g = G + 2 * i; t = T + 2 * i
        a(f'v_pk_mul_f32 v[{t}:{t+1}], v[{t}:{t+1}], v[{g}:{g+1}]')
    for i in range(8):
        a(f'v_exp_f32 v{T+i}, v{T+i}')
    for i in range(4):
        g = G + 2 * i; t = T + 2 * i
        a(f'v_pk_mul_f32 v[{g}:{g+1}], v[{g}:{g+1}], v[{g+8}:{g+9}]',
          f'v_pk_add_f32 v[{t}:{t+1}], v[{t}:{t+1}], 1.0 op_sel_hi:[1,0]')
    for i in range(8):
        a(f'v_rcp_f32 v{T+i}, v{T+i}')
    for i in range(4):
        g = G + 2 * i; t = T + 2 * i
        a(f'v_pk_mul_f32 v[{g}:{g+1}], v[{g}:{g+1}], v[{t}:{t+1}]')
    for i in range(4):
        a(f'v_cvt_pk_bf16_f32 v{O+i}, v{G+2*i}, v{G+2*i+1}')

def interleave(main, fill, per):
    out = []; fi = 0
    for k, m in enumerate(main):
        out.append(m)
        n = per[k] if k < len(per) else 0
        for _ in range(n):
            if fi < len(fill):
                out.append(fill[fi]); fi += 1
    out.extend(fill[fi:])
    return out

X_BASE = 0; X_ST = 16384
GU_BASE = 65536; GU_ST = 14592; UP_OFF = 7168 + 128
QKV_BASE = GU_BASE + 4 * GU_ST; QKV_ST = 6144
WPHI_BASE = QKV_BASE + 4 * QKV_ST
K2_LDS = WPHI_BASE + 2048
PT_ROW = 136
PT_BASE = 0; PT_W = 32 * PT_ROW * 2
KVP_BASE = 40960; KVP_W = 8448

def k2():
    a = Asm(); header(a, 'gemm1_kernel')
    ACC = 96
    acc = lambda nb, tt: ACC + (nb * 2 + tt) * 16
    SET = [40, 68]
    xf = lambda s, tt: SET[s] + tt * 4
    wf = lambda s, nb: SET[s] + 8 + nb * 4
    vDX, vD2, vD3, vD4, vRX0, vRX1, vRG, vRQ, vLANE, vHH = 1, 2, 3, 4, 5, 6, 7, 8, 9, 10
    a('s_cmp_ge_u32 s2, 256', 's_cbranch_scc1 L2_done')
    a('s_load_dwordx4 s[40:43], s[0:1], 8',
      's_load_dwordx4 s[44:47], s[0:1], 40',
      's_load_dwordx2 s[48:49], s[0:1], 80')
    a('v_lshrrev_b32 v11, 6, v0', f'v_and_b32 v{vLANE}, 63, v0', 'v_readfirstlane_b32 s50, v11')
    a('s_and_b32 s3, s2, 7', 's_lshr_b32 s4, s2, 3',
      's_and_b32 s51, s4, 7',
      's_lshr_b32 s4, s4, 3', 's_lshl_b32 s3, s3, 2', 's_add_u32 s52, s3, s4')
    a('s_and_b32 s53, s50, 3', 's_lshr_b32 s54, s50, 2')
    a(f'v_lshrrev_b32 v{vHH}, 5, v{vLANE}')
    a(f'v_lshlrev_b32 v{vDX}, 4, v{vLANE}', 's_lshl_b32 s5, s50, 11', f'v_add_u32 v{vDX}, s5, v{vDX}')
    a('v_mul_u32_u24 v11, 4682, v0', 'v_lshrrev_b32 v11, 16, v11',
      'v_mul_u32_u24 v12, 14, v11', 'v_sub_u32 v12, v0, v12',
      'v_mul_u32_u24 v11, 7168, v11', 'v_lshl_add_u32 v11, v12, 4, v11',
      's_mul_i32 s5, s52, 224', f'v_add_u32 v{vD2}, s5, v11', f'v_mov_b32 v{vD3}, v{vD2}')
    a(f'v_lshrrev_b32 v11, 2, v{vLANE}', 'v_mul_u32_u24 v11, 6144, v11',
      f'v_and_b32 v12, 3, v{vLANE}', 'v_lshl_add_u32 v11, v12, 4, v11',
      's_lshl_b32 s5, s52, 6', 'v_add_u32 v11, s5, v11')
    a('s_lshr_b32 s5, s53, 1', 's_lshl_b32 s5, s5, 11', 's_and_b32 s6, s53, 1', 's_mul_i32 s6, s6, %d' % (16 * 6144),
      's_add_u32 s5, s5, s6', f'v_add_u32 v{vD4}, s5, v11')
    a('s_waitcnt lgkmcnt(0)')
    a('s_lshl_b32 s5, s51, 19', 's_add_u32 s8, s48, s5', 's_addc_u32 s9, s49, 0', 's_and_b32 s9, s9, 0xffff',
      's_mov_b32 s10, 0x80000', 's_mov_b32 s11, 0x20000')
    srd(a, 12, 44, 45, 1024 * 7168); srd(a, 16, 46, 47, 1024 * 7168); srd(a, 20, 40, 41, 1024 * 6144)
    a('s_mov_b32 s27, %d' % (32 * 7168),
      's_lshl_b32 s5, s50, 10',
      's_add_u32 s29, s5, %d' % GU_BASE, 's_add_u32 s30, s5, %d' % (GU_BASE + UP_OFF),
      's_lshl_b32 s5, s53, 10', 's_add_u32 s31, s5, %d' % QKV_BASE,
      's_lshl_b32 s28, s50, 11',
      's_mov_b32 s33, %d' % GU_ST)
    a('s_cmp_lg_u32 s50, 7', 's_cbranch_scc1 L2_not7')
    a('s_mov_b32 s12, s20', 's_mov_b32 s13, s21', 's_mov_b32 s14, s22',
      's_mov_b32 s16, s20', 's_mov_b32 s17, s21', 's_mov_b32 s18, s22',
      's_mov_b32 s27, %d' % (32 * 6144),
      's_mov_b32 s29, %d' % (QKV_BASE + 4096), 's_mov_b32 s30, %d' % (QKV_BASE + 5120),
      's_mov_b32 s33, %d' % QKV_ST,
      f'v_add_u32 v{vD2}, 4096, v11', f'v_add_u32 v{vD3}, {4096 + 16 * 6144}, v11')
    a('L2_not7:')
    a('s_mov_b32 s32, 0', 's_lshl_b32 s34, s33, 1', 's_add_u32 s35, s34, s33')
    a('s_mov_b32 s24, 0', 's_mov_b32 s25, 0', 's_mov_b32 s26, 0')
    a('s_and_b32 s5, s50, 6', 's_cmp_lg_u32 s5, 4', 's_cbranch_scc1 L2_nophi')
    srd(a, 56, 42, 43, 65536)
    a('s_and_b32 s5, s50, 1', 's_lshl_b32 s5, s5, 10', 's_lshl_b32 s6, s52, 11', 's_add_u32 s6, s6, s5',
      's_add_u32 m0, s5, %d' % WPHI_BASE,
      f'v_lshlrev_b32 v12, 4, v{vLANE}',
      'buffer_load_dwordx4 v12, s[56:59], s6 offen lds')
    a('L2_nophi:')

    def dma(slot, five):
        g = []
        g.append([f's_add_u32 m0, s28, {X_BASE + slot * X_ST}', f'buffer_load_dwordx4 v{vDX}, s[8:11], s24 offen lds'])
        g.append([f'buffer_load_dwordx4 v{vDX}, s[8:11], s24 offen offset:1024 lds', 's_add_u32 s24, s24, 16384'])
        g.append([f's_add_u32 m0, s29, s{32+slot}', f'buffer_load_dwordx4 v{vD2}, s[12:15], s25 offen lds'])
        g.append([f's_add_u32 m0, s30, s{32+slot}', f'buffer_load_dwordx4 v{vD3}, s[16:19], s25 offen lds', 's_add_u32 s25, s25, s27'])
        if five:
            g.append([f's_add_u32 m0, s31, {slot * QKV_ST}', f'buffer_load_dwordx4 v{vD4}, s[20:23], s26 offen lds',
                      's_add_u32 s26, s26, %d' % (32 * 6144)])
        return g

    a(f'v_and_b32 v11, 31, v{vLANE}', 'v_bfe_u32 v12, v11, 2, 2', f'v_xor_b32 v12, v12, v{vHH}',
      'v_lshlrev_b32 v12, 4, v12', 'v_lshl_add_u32 v12, v11, 6, v12',
      's_lshl_b32 s5, s53, 12', f'v_add_u32 v{vRX0}, s5, v12', f'v_xor_b32 v{vRX1}, 32, v{vRX0}')
    a(f'v_bfe_u32 v11, v{vLANE}, 2, 2', f'v_lshl_add_u32 v11, v{vHH}, 3, v11',
      f'v_and_b32 v12, 3, v{vLANE}', 'v_lshlrev_b32 v12, 3, v12',
      f'v_bfe_u32 v13, v{vLANE}, 4, 1')
    a(f'v_mul_u32_u24 v{vRG}, 224, v11', f'v_add_u32 v{vRG}, v{vRG}, v12',
      f'v_mul_u32_u24 v14, {UP_OFF}, v13', f'v_add_u32 v{vRG}, v{vRG}, v14', f'v_add_u32 v{vRG}, {GU_BASE}, v{vRG}')
    a(f'v_lshlrev_b32 v{vRQ}, 6, v11', f'v_add_u32 v{vRQ}, v{vRQ}, v12', f'v_lshl_add_u32 v{vRQ}, v13, 5, v{vRQ}',
      f'v_add_u32 v{vRQ}, {QKV_BASE}, v{vRQ}')

    def reads(wn, s, slot, c):
        r = []
        for tt in range(2):
            d = xf(s, tt)
            r.append(f'ds_read_b128 v[{d}:{d+3}], v{vRX1 if c else vRX0} offset:{X_BASE + slot * X_ST + tt * 2048}')
        for nb in range(5):
            d = wf(s, nb)
            for p in range(2):
                if wn == 0 and nb < 3:
                    off = slot * QKV_ST + nb * 2048 + c * 1024 + p * 256
                    r.append(f'ds_read_b64_tr_b16 v[{d+2*p}:{d+2*p+1}], v{vRQ} offset:{off}')
                else:
                    seg = nb - 3 if wn == 0 else nb + 2
                    off = slot * GU_ST + (c * 16 + p * 4) * 224 + seg * 32
                    r.append(f'ds_read_b64_tr_b16 v[{d+2*p}:{d+2*p+1}], v{vRG} offset:{off}')
        return r
    def mfmas(wn, s):
        m = []
        for nb in range(5):
            for tt in range(2):
                A, B = wf(s, nb), xf(s, tt)
                if wn == 0 and nb == 2: A, B = B, A
                d = acc(nb, tt)
                m.append(f'v_mfma_f32_32x32x16_bf16 v[{d}:{d+15}], v[{A}:{A+3}], v[{B}:{B+3}], v[{d}:{d+15}]')
        return m

    a('s_cmp_lg_u32 s54, 0', 's_cbranch_scc1 L2_wn1')
    for wn in range(2):
        five = (wn == 0)
        n = 5 if five else 4
        if wn == 1: a('L2_wn1:')
        for st in range(3):
            for g in dma(st, five): a(*g)
        for r in range(ACC, 256): a(f'v_mov_b32 v{r}, 0')
        for r in range(SET[1], SET[1] + 28): a(f'v_mov_b32 v{r}, 0')
        a('s_mov_b32 s36, 0')
        body = []
        for slot in range(4):
            body.append(f's_waitcnt vmcnt({2*n}) lgkmcnt(0)')
            body.append('s_barrier')
            g = dma((slot + 3) & 3, five)
            fa = reads(wn, 0, slot, 0) + g[0] + g[1]
            body += interleave(mfmas(wn, 1), fa, [2] * 10)
            body.append('s_waitcnt lgkmcnt(0)')
            fb = reads(wn, 1, slot, 1) + sum(g[2:], [])
            body += interleave(mfmas(wn, 0), fb, [2] * 10)
        body += ['s_add_u32 s36, s36, 1', 's_cmp_lt_u32 s36, 8', f's_cbranch_scc1 L2_loop{wn}']
        check_loop(body)
        a(f'L2_loop{wn}:'); a(*body)
        a('s_waitcnt lgkmcnt(0)')
        a(*mfmas(wn, 1))
        a('s_waitcnt vmcnt(0)', 's_barrier')
        srd(a, 8, 48, 49, 16 * ACT_MT, ACT_OFF)
        a('s_lshl_b32 s5, s51, 1', 's_lshr_b32 s6, s53, 1', 's_add_u32 s60, s5, s6',
          's_mul_i32 s5, s60, %d' % ACT_MT, 's_and_b32 s6, s53, 1', 's_lshl_b32 s61, s6, 11', 's_add_u32 s5, s5, s61',
          's_mul_i32 s6, s52, %d' % (7 * 4096), 's_add_u32 s62, s5, s6')
        vL16 = 11
        a(f'v_lshlrev_b32 v{vL16}, 4, v{vLANE}')
        a('s_mov_b32 s64, %s' % hx(f2u(LOG2E)), 's_mov_b32 s65, %s' % hx(f2u(LOG2E)))
        c0 = -2.0 * 0.7978845608028654 * LOG2E
        a('s_mov_b32 s66, %s' % hx(f2u(c0 * 0.044715)), 's_mov_b32 s67, %s' % hx(f2u(c0 * 0.044715)),
          'v_mov_b32 v12, %s' % hx(f2u(c0)), 'v_mov_b32 v13, %s' % hx(f2u(c0)))
        def gu_block(nb, tt, k):
            seg = nb - 3 if wn == 0 else nb + 2
            O = 16 + 4 * (k & 1)
            geglu(a, acc(nb, tt), 24, O, 66, 12)
            a(f's_add_u32 s63, s62, {seg * 4096}',
              f'buffer_store_dwordx4 v[{O}:{O+3}], v{vL16}, s[8:11], s63 offen offset:{tt * 1024}')
        if wn == 0:
            srd(a, 12, 48, 49, 0x400000, QF_OFF)
            a('s_lshl_b32 s5, s60, 18', 's_lshl_b32 s6, s52, 13', 's_add_u32 s5, s5, s6', 's_lshl_b32 s6, s61, 1', 's_add_u32 s63, s5, s6')
            for tt in range(2):
                q = acc(0, tt); O = 40 + 8 * tt
                for i in range(8): a(f'v_cvt_pk_bf16_f32 v{O+i}, v{q+2*i}, v{q+2*i+1}')
                for c in range(2):
                    a(f'buffer_store_dwordx4 v[{O+4*c}:{O+4*c+3}], v{vL16}, s[12:15], s63 offen offset:{tt * 2048 + c * 1024}')
            WP = 16
            a(f'v_bfe_u32 v14, v{vLANE}, 2, 2', f'v_lshl_add_u32 v14, v{vHH}, 2, v14',
              f'v_and_b32 v15, 3, v{vLANE}', 'v_lshlrev_b32 v15, 3, v15',
              f'v_bfe_u32 v24, v{vLANE}, 4, 1', 'v_lshl_add_u32 v15, v24, 5, v15',
              'v_lshl_add_u32 v25, v14, 6, v15', f'v_add_u32 v25, {WPHI_BASE}, v25')
            for c in range(2):
                for p in range(2):
                    a(f'ds_read_b64_tr_b16 v[{WP+4*c+2*p}:{WP+4*c+2*p+1}], v25 offset:{(16*c + 8*p) * 64}')
            a('s_mul_i32 s5, s53, %d' % PT_W,
              f'v_and_b32 v24, 31, v{vLANE}', f'v_mul_u32_u24 v24, {PT_ROW}, v24', f'v_lshl_add_u32 v24, v{vHH}, 3, v24',
              'v_add_u32 v24, s5, v24',
              f'v_mul_u32_u24 v25, {PT_ROW}, v14', 'v_add_u32 v25, v25, v15', 'v_add_u32 v25, s5, v25')
            KVA = acc(0, 0)
            ZA = 56
            ONES = 88
            for i in range(4): a(f'v_mov_b32 v{ONES+i}, 0x3f803f80')
            a('s_waitcnt lgkmcnt(0)')
            for tt in range(2):
                k = acc(1, tt); v = acc(2, tt)
                KB = 40
                for i in range(8): a(f'v_cvt_pk_bf16_f32 v{KB+i}, v{k+2*i}, v{k+2*i+1}')
                a(f'v_mfma_f32_32x32x16_bf16 v[{k}:{k+15}], v[{WP}:{WP+3}], v[{KB}:{KB+3}], 0',
                  f'v_mfma_f32_32x32x16_bf16 v[{k}:{k+15}], v[{WP+4}:{WP+7}], v[{KB+4}:{KB+7}], v[{k}:{k+15}]')
                VB = 48
                for i in range(8): a(f'v_cvt_pk_bf16_f32 v{VB+i}, v{v+2*i}, v{v+2*i+1}')
                softmax_pair(a, k, v, 26, 40, 32, 64)
                boff = tt * 32 * PT_ROW
                for aa in range(4):
                    a(f'ds_write_b64 v24, v[{40+2*aa}:{41+2*aa}] offset:{boff + aa * 16}',
                      f'ds_write_b64 v24, v[{32+2*aa}:{33+2*aa}] offset:{boff + 64 + aa * 16}')
                a('s_waitcnt lgkmcnt(0)')
                for ft in range(2):
                    for c in range(2):
                        for p in range(2):
                            d = k + (ft * 2 + c) * 4 + 2 * p
                            a(f'ds_read_b64_tr_b16 v[{d}:{d+1}], v25 offset:{boff + (16*c + 8*p) * PT_ROW + ft * 64}')
                a('s_waitcnt lgkmcnt(0)')
                for ft in range(2):
                    for c in range(2):
                        A = k + (ft * 2 + c) * 4
                        first = (tt == 0 and c == 0)
                        d = KVA + 16 * ft; z = ZA + 16 * ft
                        a(f'v_mfma_f32_32x32x16_bf16 v[{d}:{d+15}], v[{A}:{A+3}], v[{VB+4*c}:{VB+4*c+3}], ' + ('0' if first else f'v[{d}:{d+15}]'))
                        a(f'v_mfma_f32_32x32x16_bf16 v[{z}:{z+15}], v[{A}:{A+3}], v[{ONES}:{ONES+3}], ' + ('0' if first else f'v[{z}:{z+15}]'))
            a('s_mul_i32 s5, s53, %d' % KVP_W, 's_add_u32 s5, s5, %d' % KVP_BASE,
              f'v_add_u32 v24, s5, v{vL16}', f'v_lshlrev_b32 v25, 4, v{vHH}', 'v_add_u32 v25, s5, v25')
            for ft in range(2):
                for aa in range(4):
                    d = KVA + 16 * ft + 4 * aa
                    a(f'ds_write_b128 v24, v[{d}:{d+3}] offset:{(ft * 4 + aa) * 1024}')
            a('s_mov_b32 exec_lo, 1', 's_mov_b32 exec_hi, 1')
            for ft in range(2):
                for aa in range(4):
                    z = ZA + 16 * ft + 4 * aa
                    a(f'ds_write_b128 v25, v[{z}:{z+3}] offset:{8192 + (32 * ft + 8 * aa) * 4}')
            a('s_mov_b64 exec, -1')
            a('s_waitcnt lgkmcnt(0)')
        else:
            k = 0
            for nb in range(3):
                for tt in range(2):
                    gu_block(nb, tt, k); k += 1
        a('s_barrier')
        srd(a, 16, 48, 49, KV_SIZE, KV_OFF)
        a('s_mul_i32 s63, s52, %d' % KV_HEAD, 'v_lshlrev_b32 v14, 2, v0', f'v_add_u32 v15, {KVP_BASE}, v14')
        for q in range(4):
            for p in range(4):
                a(f'ds_read_b32 v{40 + 4*q + p}, v15 offset:{p * KVP_W + q * 2048}')
        if wn == 0:
            a('s_cmp_lg_u32 s50, 0', 's_cbranch_scc1 L2_noz')
            for p in range(4):
                a(f'ds_read_b32 v{56 + p}, v15 offset:{p * KVP_W + 8192}')
            a('s_waitcnt lgkmcnt(0)', 'v_add_f32 v56, v56, v57', 'v_add_f32 v58, v58, v59', 'v_add_f32 v56, v56, v58',
              's_add_u32 s5, s63, 8192',
              'buffer_atomic_add_f32 v56, v14, s[16:19], s5 offen')
            a('L2_noz:')
        a('s_waitcnt lgkmcnt(0)')
        for q in range(4):
            b = 40 + 4 * q
            a(f'v_add_f32 v{b}, v{b}, v{b+1}', f'v_add_f32 v{b+2}, v{b+2}, v{b+3}', f'v_add_f32 v{b}, v{b}, v{b+2}')
        a('s_add_u32 s5, s63, 4096')
        for q in range(4):
            a(f'buffer_atomic_add_f32 v{40+4*q}, v14, s[16:19], {"s63" if q < 2 else "s5"} offen offset:{(q & 1) * 2048}')
        k = 0
        for nb in range(3, 5):
            for tt in range(2):
                gu_block(nb, tt, k); k += 1
        a('s_endpgm')
    a('L2_done:', 's_endpgm')
    return a.finish(), descriptor('gemm1_kernel', 256, 256, 96)

K3_RING = 16384 + 2048
RED_ROW = 272; RED_W = 128 * RED_ROW
K3_LDS = 4 * RED_W

def k3():
    a = Asm(); header(a, 'gemm2_kernel')
    acc = lambda tt, nb: (tt * 2 + nb) * 16
    H = lambda slot, tt: 128 + slot * 16 + tt * 4
    WS = [16, 24]
    vLANE, vHH, vDH, vDW0, vDW1, vR0, vR1, vPOLL, vZERO, vL16 = 1, 2, 3, 4, 5, 6, 7, 8, 9, 10
    a('s_cmp_ge_u32 s2, 256', 's_cbranch_scc1 L3_done')
    a('s_load_dwordx2 s[40:41], s[0:1], 0',
      's_load_dwordx4 s[44:47], s[0:1], 16',
      's_load_dwordx8 s[48:55], s[0:1], 56')
    a('v_lshrrev_b32 v11, 6, v0', f'v_and_b32 v{vLANE}, 63, v0', 'v_readfirstlane_b32 s56, v11')
    a('s_and_b32 s3, s2, 7', 's_lshr_b32 s4, s2, 3',
      's_lshr_b32 s5, s3, 1', 's_lshl_b32 s5, s5, 2', 's_and_b32 s6, s4, 3', 's_add_u32 s57, s5, s6',
      's_and_b32 s5, s3, 1', 's_lshl_b32 s5, s5, 3', 's_lshr_b32 s6, s4, 2', 's_add_u32 s58, s5, s6')
    a(f'v_lshrrev_b32 v{vHH}, 5, v{vLANE}', f'v_lshlrev_b32 v{vL16}, 4, v{vLANE}', f'v_mov_b32 v{vZERO}, 0')
    a('s_lshl_b32 s5, s56, 12', f'v_add_u32 v{vDH}, s5, v{vL16}')
    a(f'v_lshrrev_b32 v11, 3, v{vLANE}', 'v_and_b32 v12, 2, v11', 'v_lshlrev_b32 v12, 1, v12',
      f'v_and_b32 v13, 7, v{vLANE}', 'v_xor_b32 v12, v12, v13', 'v_lshlrev_b32 v12, 4, v12',
      'v_lshl_add_u32 v12, v11, 11, v12',
      's_lshl_b32 s5, s56, 15', 's_lshl_b32 s6, s58, 7', 's_add_u32 s5, s5, s6',
      f'v_add_u32 v{vDW0}, s5, v12', f'v_add_u32 v{vDW1}, {16384 - 1024}, v{vDW0}')
    a('s_mul_i32 s59, s56, %d' % K3_RING)
    a(f'v_bfe_u32 v11, v{vLANE}, 2, 2', f'v_lshl_add_u32 v12, v{vHH}, 2, v11',
      'v_and_b32 v11, 2, v11', f'v_bfe_u32 v13, v{vLANE}, 4, 1', 'v_xor_b32 v11, v11, v13',
      f'v_and_b32 v14, 3, v{vLANE}', 'v_lshlrev_b32 v14, 3, v14',
      f'v_lshl_add_u32 v{vR0}, v11, 5, v14', f'v_lshl_add_u32 v{vR0}, v12, 7, v{vR0}',
      f'v_add_u32 v{vR0}, s59, v{vR0}', f'v_xor_b32 v{vR1}, 64, v{vR0}')
    a('v_lshl_add_u32 v15, v13, 5, v14', 'v_lshl_add_u32 v15, v12, 6, v15', 'v_add_u32 v15, s59, v15')
    a('s_waitcnt lgkmcnt(0)')
    a('s_mul_i32 s5, s57, %d' % ACT_MT, 's_add_u32 s5, s5, %s' % hx(ACT_OFF),
      's_add_u32 s8, s54, s5', 's_addc_u32 s9, s55, 0', 's_and_b32 s9, s9, 0xffff', 's_mov_b32 s10, %d' % ACT_MT, 's_mov_b32 s11, 0x20000')
    srd(a, 12, 48, 49, 3584 * 2048); srd(a, 16, 52, 53, 256)
    srd(a, 20, 54, 55, 0x400000, QF_OFF); srd(a, 24, 54, 55, KV_SIZE, KV_OFF); srd(a, 28, 44, 45, 65536)
    a('s_and_b32 s5, s56, 1', 's_lshl_b32 s60, s58, 1', 's_add_u32 s60, s60, s5',
      's_lshr_b32 s61, s56, 1')
    Q = 32; KVF = 48; ZF = 80
    a('s_lshl_b32 s5, s60, 11', 's_add_u32 m0, s59, 16384',
      f'buffer_load_dwordx4 v{vL16}, s[28:31], s5 offen lds',
      f'buffer_load_dwordx4 v{vL16}, s[28:31], s5 offen offset:1024 lds')
    a('s_lshl_b32 s5, s57, 18', 's_lshl_b32 s6, s60, 13', 's_add_u32 s5, s5, s6', 's_lshl_b32 s6, s61, 12', 's_add_u32 s5, s5, s6')
    for i in range(4):
        a(f'buffer_load_dwordx4 v[{Q+4*i}:{Q+4*i+3}], v{vL16}, s[20:23], s5 offen offset:{i * 1024}')
    a('s_mul_i32 s5, s60, %d' % KV_HEAD, 's_add_u32 s6, s5, 4096', 's_add_u32 s7, s5, 8192', f'v_lshlrev_b32 v11, 4, v{vHH}')
    for i in range(8):
        a(f'buffer_load_dwordx4 v[{KVF+4*i}:{KVF+4*i+3}], v{vL16}, s[24:27], {"s5" if i < 4 else "s6"} offen offset:{(i & 3) * 1024}')
    for i in range(8):
        a(f'buffer_load_dwordx4 v[{ZF+4*i}:{ZF+4*i+3}], v11, s[24:27], s7 offen offset:{i * 32}')
    a('s_mov_b32 s32, 0', 's_mov_b32 s33, 0')
    def wdma(slot):
        return [f's_add_u32 m0, s59, {slot * 2048}',
                f'buffer_load_dwordx4 v{vDW0}, s[12:15], s32 offen lds',
                f'buffer_load_dwordx4 v{vDW1}, s[12:15], s32 offen offset:1024 lds',
                's_add_u32 s32, s32, 0x20000']
    def hload(slot, tt):
        d = H(slot, tt)
        return f'buffer_load_dwordx4 v[{d}:{d+3}], v{vDH}, s[8:11], s33 offen offset:{tt * 1024} sc1'
    for s in range(8):
        a(*wdma(s))
        for tt in range(4): a(hload(s, tt))
        a('s_add_u32 s33, s33, 0x4000')
    for r in range(128): a(f'v_accvgpr_write_b32 a{r}, 0')
    a('s_mov_b32 s64, %s' % hx(f2u(LOG2E)), 's_mov_b32 s65, %s' % hx(f2u(LOG2E)))
    a('s_waitcnt vmcnt(48)')
    WP = 16
    for c in range(2):
        for p in range(2):
            a(f'ds_read_b64_tr_b16 v[{WP+4*c+2*p}:{WP+4*c+2*p+1}], v15 offset:{16384 + (16*c + 8*p) * 64}')
    for i in range(16): a(f'v_cvt_pk_bf16_f32 v{KVF+i}, v{KVF+2*i}, v{KVF+2*i+1}')
    for i in range(16): a(f'v_cvt_pk_bf16_f32 v{ZF+i}, v{ZF+2*i}, v{ZF+2*i+1}')
    P = 64; E = 96; PH = 112
    a('s_waitcnt lgkmcnt(0)')
    a('s_lshl_b32 s5, s60, 13', 's_add_u32 s5, s5, %d' % (224 * 4096), 's_lshl_b32 s6, s61, 11', 's_add_u32 s62, s5, s6', 's_add_u32 s63, s62, 4096')
    for tt in range(2):
        q = Q + 8 * tt
        a(f'v_mfma_f32_32x32x16_bf16 v[{P}:{P+15}], v[{WP}:{WP+3}], v[{q}:{q+3}], 0',
          f'v_mfma_f32_32x32x16_bf16 v[{P}:{P+15}], v[{WP+4}:{WP+7}], v[{q+4}:{q+7}], v[{P}:{P+15}]')
        softmax_pair(a, P, E, 24, PH, PH + 8, 64)
        for c in range(4):
            a(f'v_mfma_f32_32x32x16_bf16 v[{P}:{P+15}], v[{KVF+4*c}:{KVF+4*c+3}], v[{PH+4*c}:{PH+4*c+3}], ' + ('0' if c == 0 else f'v[{P}:{P+15}]'))
        for c in range(4):
            a(f'v_mfma_f32_32x32x16_bf16 v[{E}:{E+15}], v[{ZF+4*c}:{ZF+4*c+3}], v[{PH+4*c}:{PH+4*c+3}], ' + ('0' if c == 0 else f'v[{E}:{E+15}]'))
        a(f'v_add_f32 v24, {hx(f2u(1e-6))}, v{E}', 'v_rcp_f32 v24, v24')
        for i in range(8):
            a(f'v_pk_mul_f32 v[{P+2*i}:{P+2*i+1}], v[{P+2*i}:{P+2*i+1}], v[24:25] op_sel_hi:[1,0]')
        for i in range(8):
            a(f'v_cvt_pk_bf16_f32 v{q+i}, v{P+2*i}, v{P+2*i+1}')
        a(f'buffer_store_dwordx4 v[{q}:{q+3}], v{vL16}, s[8:11], s62 offen offset:{tt * 1024} sc1',
          f'buffer_store_dwordx4 v[{q+4}:{q+7}], v{vL16}, s[8:11], s63 offen offset:{tt * 1024} sc1')
    def wreads(slot, s):
        r = []
        for nb in range(2):
            for p in range(2):
                d = WS[s] + nb * 4 + 2 * p
                r.append(f'ds_read_b64_tr_b16 v[{d}:{d+1}], v{vR1 if nb else vR0} offset:{slot * 2048 + p * 1024}')
        return r
    a('s_waitcnt vmcnt(46)')
    a(*wreads(0, 0))
    a('s_lshl_b32 s66, s57, 2', 's_mov_b32 s36, 0', f'v_mov_b32 v{vPOLL}, 0')
    a('L3_loop:')
    a('s_cmp_lg_u32 s36, 1', 's_cbranch_scc1 L3_nosig')
    a('s_barrier', 's_cmp_lg_u32 s56, 0', 's_cbranch_scc1 L3_nosig')
    a('v_mov_b32 v11, 1', 's_mov_b64 exec, 1', f'buffer_atomic_add v11, v{vZERO}, s[16:19], s66 offen', 's_mov_b64 exec, -1')
    a('L3_nosig:')
    a('s_cmp_lg_u32 s36, 6', 's_cbranch_scc1 L3_nosw')
    srd(a, 12, 46, 47, 1024 * 2048)
    a('s_mov_b32 s32, 0')
    a('s_waitcnt vmcnt(40)', 's_mov_b32 s67, 0')
    a('L3_poll:')
    a(f'v_readfirstlane_b32 s5, v{vPOLL}', 's_cmp_ge_u32 s5, 16', 's_cbranch_scc1 L3_nosw')
    a('s_add_u32 s67, s67, 1', 's_cmp_ge_u32 s67, 0x40000', 's_cbranch_scc1 L3_nosw')
    a('s_sleep 2', f'buffer_load_dword v{vPOLL}, v{vZERO}, s[16:19], s66 offen sc1', 's_waitcnt vmcnt(0)', 's_branch L3_poll')
    a('L3_nosw:')
    body = []
    for u in range(8):
        s = u & 1
        body.append('s_waitcnt vmcnt(40) lgkmcnt(0)')
        if u == 0:
            body.append(f'buffer_load_dword v{vPOLL}, v{vZERO}, s[16:19], s66 offen sc1')
        m = []
        for tt in range(4):
            for nb in range(2):
                d = acc(tt, nb); A = WS[s] + nb * 4; B = H(u, tt)
                m.append(f'v_mfma_f32_32x32x16_bf16 a[{d}:{d+15}], v[{A}:{A+3}], v[{B}:{B+3}], a[{d}:{d+15}]')
        rd = wreads((u + 1) & 7, s ^ 1); w = wdma(u)
        body += [m[0], rd[0], rd[1], w[0], m[1], rd[2], rd[3], w[1], m[2], w[2], w[3], hload(u, 0), m[3], m[4], hload(u, 1), m[5], m[6],
                 hload(u, 2), m[7], hload(u, 3), 's_add_u32 s33, s33, 0x4000']
    body += ['s_add_u32 s36, s36, 1', 's_cmp_lt_u32 s36, 9', 's_cbranch_scc1 L3_loop']
    check_loop(body)
    a(*body)
    srd(a, 20, 40, 41, 0x400000); srd(a, 24, 50, 51, 0x400000)
    a('v_lshrrev_b32 v11, 3, v0', 'v_and_b32 v12, 7, v0',
      'v_lshlrev_b32 v13, 11, v11', 'v_lshl_add_u32 v13, v12, 4, v13',
      's_lshl_b32 s5, s57, 18', 's_lshl_b32 s6, s58, 7', 's_add_u32 s5, s5, s6')
    a('s_waitcnt vmcnt(0) lgkmcnt(0)')
    for q in range(4):
        a(f's_add_u32 s{68+q}, s5, {q * 32 * 2048}', f'buffer_load_dwordx4 v[{32+4*q}:{35+4*q}], v13, s[20:23], s{68+q} offen')
    a('s_barrier')
    a('s_mul_i32 s6, s56, %d' % RED_W,
      f'v_and_b32 v14, 31, v{vLANE}', f'v_mul_u32_u24 v14, {RED_ROW}, v14', f'v_lshl_add_u32 v14, v{vHH}, 4, v14', 'v_add_u32 v14, s6, v14')
    for tt in range(4):
        for nb in range(2):
            for aa in range(4):
                d = acc(tt, nb) + 4 * aa
                a(f'ds_write_b128 v14, a[{d}:{d+3}] offset:{tt * 32 * RED_ROW + nb * 128 + aa * 32}')
    a(f'v_mul_u32_u24 v14, {RED_ROW}, v11', 'v_lshl_add_u32 v14, v12, 5, v14', f'v_add_u32 v15, {2 * RED_W}, v14')
    a('s_waitcnt lgkmcnt(0)', 's_barrier')
    for q in range(4):
        for p in range(4):
            for hf in range(2):
                d = 128 + q * 32 + p * 8 + hf * 4
                a(f'ds_read_b128 v[{d}:{d+3}], v{14 if p < 2 else 15} offset:{(p & 1) * RED_W + q * 32 * RED_ROW + hf * 16}')
    a('s_waitcnt vmcnt(0)')
    for q in range(4):
        a(f's_waitcnt lgkmcnt({min(15, (3 - q) * 8)})')
        b = 128 + q * 32; x = 32 + 4 * q
        for i in range(4):
            a(f'v_pk_add_f32 v[{b+2*i}:{b+2*i+1}], v[{b+2*i}:{b+2*i+1}], v[{b+8+2*i}:{b+9+2*i}]',
              f'v_pk_add_f32 v[{b+16+2*i}:{b+17+2*i}], v[{b+16+2*i}:{b+17+2*i}], v[{b+24+2*i}:{b+25+2*i}]',
              f'v_lshlrev_b32 v{b+8+2*i}, 16, v{x+i}', f'v_and_b32 v{b+9+2*i}, 0xffff0000, v{x+i}',
              f'v_pk_add_f32 v[{b+2*i}:{b+2*i+1}], v[{b+2*i}:{b+2*i+1}], v[{b+16+2*i}:{b+17+2*i}]',
              f'v_pk_add_f32 v[{b+2*i}:{b+2*i+1}], v[{b+2*i}:{b+2*i+1}], v[{b+8+2*i}:{b+9+2*i}]',
              f'v_cvt_pk_bf16_f32 v{x+i}, v{b+2*i}, v{b+2*i+1}')
        a(f'buffer_store_dwordx4 v[{x}:{x+3}], v13, s[24:27], s{68+q} offen')
    a('L3_done:', 's_endpgm')
    return a.finish(), descriptor('gemm2_kernel', 384, 256, 96)

def main(out):
    hdr = open('cdna_kernels/%s.s.ref' % NAME).read().split('\n')
    top = [l for l in hdr if l.startswith(';') and '@launch' not in l and 'Override launch' not in l and 'grid=ceil' not in l]
    top += ['; Generated by gen/gen.py (hand-written generator; no compiler output).',
            '; @launch kernel=ln_kernel grid=(256,1,1) block=(512,1,1) lds=512',
            f'; @launch kernel=gemm1_kernel grid=(256,1,1) block=(512,1,1) lds={K2_LDS}',
            f'; @launch kernel=gemm2_kernel grid=(256,1,1) block=(256,1,1) lds={K3_LDS}',
            '.amdgcn_target "amdgcn-amd-amdhsa--gfx950"']
    ks = [k1(), k2(), k3()]
    s = '\n'.join(top) + '\n' + ''.join(k[0] for k in ks) + ''.join(k[1] for k in ks)
    open(out, 'w').write(s)

if __name__ == '__main__':
    main(sys.argv[1] if len(sys.argv) > 1 else 'cdna_kernels/%s.s' % NAME)
```

```python
import sys, struct, os
from asmlib import Asm, check_loop

NAME = 'parallel_sum__linear_kernel_hedgehog__geglu_ffn__prompt'
def f2u(x): return struct.unpack('<I', struct.pack('<f', x))[0]
def hx(x): return '0x%x' % x

XN_OFF = 0
ACT_OFF = 0x400000
ACT_MT = 288 * 4096
QF_OFF = 0x1600000
KV_OFF = 0x1A00000
KV_HEAD = 2112 * 4
KV_SIZE = 32 * KV_HEAD
FLAG_REL = KV_SIZE
ZERO_SIZE = 256 * 1216
PART_OFF = 0x2000000
LOG2E = 1.4426950408889634

PROF = int(os.environ.get('PROF', '0'))
PROF_OFF = 0x8000000
EXP = os.environ.get('EXP', '')
LA = int(os.environ.get('LA', '2')); R1 = int(os.environ.get('R1', '128'))
PFIT = int(os.environ.get('PFIT', '1'))
K2ST = ' sc1' if 'k2sc1' in EXP else (' nt' if 'k2nt' in EXP else '')
def stamp(a, i):
    if not PROF: return
    a(f's_memtime s[{72+4*i}:{73+4*i}]', f's_memrealtime s[{74+4*i}:{75+4*i}]', 's_waitcnt lgkmcnt(0)')
def stamp_out(a, kidx, wslo, swave, n=6):
    if not PROF: return
    srd(a, 96, wslo, wslo + 1, 0x100000, PROF_OFF + kidx * 0x100000)
    a('s_lshl_b32 s100, s2, 9', f's_lshl_b32 s101, s{swave}, 6', 's_add_u32 s100, s100, s101')
    for i in range(n):
        a(f'v_mov_b32 v{16+2*i}, s{72+4*i}', f'v_mov_b32 v{17+2*i}, s{74+4*i}')
    a('v_mov_b32 v28, 0', 's_mov_b64 exec, 1')
    for i in range(0, n, 2):
        a(f'buffer_store_dwordx4 v[{16+2*i}:{19+2*i}], v28, s[96:99], s100 offen offset:{8*i}')
    a('s_mov_b64 exec, -1')

def srd(a, d, lo, hi, size, off=0):
    if off:
        a(f's_add_u32 s{d}, s{lo}, {hx(off)}', f's_addc_u32 s{d+1}, s{hi}, 0')
    else:
        a(f's_mov_b32 s{d}, s{lo}', f's_mov_b32 s{d+1}, s{hi}')
    a(f's_and_b32 s{d+1}, s{d+1}, 0xffff')
    a(f's_mov_b32 s{d+2}, {hx(size)}', f's_mov_b32 s{d+3}, 0x20000')

def header(a, name):
    a('.text', f'.globl {name}', '.p2align 8', f'.type {name},@function', f'{name}:')

def descriptor(name, vgpr, accum, sgpr=96):
    if PROF: sgpr = 102
    return f'''.section .rodata,"a"
.p2align 6
.amdhsa_kernel {name}
  .amdhsa_next_free_vgpr {vgpr}
  .amdhsa_next_free_sgpr {sgpr}
  .amdhsa_accum_offset {accum}
  .amdhsa_group_segment_fixed_size 0
  .amdhsa_kernarg_size 88
  .amdhsa_user_sgpr_count 2
  .amdhsa_user_sgpr_kernarg_segment_ptr 1
  .amdhsa_system_sgpr_workgroup_id_x 1
.end_amdhsa_kernel
'''

def k1():
    a = Asm(); header(a, 'ln_kernel')
    a('s_cmp_ge_u32 s2, 256', 's_cbranch_scc1 L1_done')
    a('s_load_dwordx4 s[4:7], s[0:1], 0', 's_load_dwordx4 s[36:39], s[0:1], 40', 's_load_dwordx2 s[34:35], s[0:1], 80')
    a('v_and_b32 v1, 63, v0',
      'v_lshrrev_b32 v2, 6, v0',
      'v_lshrrev_b32 v3, 3, v1',
      'v_and_b32 v12, 7, v1',
      's_lshl_b32 s3, s2, 14',
      'v_lshlrev_b32 v13, 11, v3',
      'v_lshl_add_u32 v13, v2, 8, v13',
      'v_lshl_add_u32 v13, v12, 4, v13')
    a('s_waitcnt lgkmcnt(0)')
    srd(a, 8, 4, 5, 0x400000)
    a('buffer_load_dwordx4 v[4:7], v13, s[8:11], s3 offen',
      'buffer_load_dwordx4 v[8:11], v13, s[8:11], s3 offen offset:128')
    NPF = 0
    if 'nok1pf' not in EXP:
        NPF = 1
        a('v_readfirstlane_b32 s26, v2', 'v_lshlrev_b32 v50, 7, v1',
          's_movk_i32 s27, 7168', 's_cmp_lt_u32 s26, 1', 's_cselect_b32 s28, s36, s38', 's_cselect_b32 s29, s37, s39',
          's_cmp_eq_u32 s26, 2', 's_cselect_b32 s28, s6, s28', 's_cselect_b32 s29, s7, s29', 's_cselect_b32 s27, 6144, s27',
          's_and_b32 s29, s29, 0xffff', 's_mov_b32 s31, 0x20000',
          's_add_u32 s30, s2, 1', 's_mul_i32 s30, s30, s27', 's_mul_i32 s27, s2, s27',
          's_cmp_lt_u32 s26, 3', 's_cselect_b32 s30, s30, 0', f's_cmp_lt_u32 s2, {R1}', 's_cselect_b32 s30, s30, 0',
          'v_add_u32 v50, s27, v50',
          'buffer_load_dword v52, v50, s[28:31], 0 offen')
    srd(a, 12, 34, 35, 0x400000, XN_OFF)
    srd(a, 16, 34, 35, ZERO_SIZE, KV_OFF)
    a('v_mov_b32 v32, 0', 'v_mov_b32 v33, 0', 'v_mov_b32 v34, 0', 'v_mov_b32 v35, 0',
      's_mul_i32 s20, s2, 1216',
      'v_lshlrev_b32 v54, 4, v0')
    a('s_and_b32 s21, s2, 3', 's_lshl_b32 s21, s21, 3',
      'v_add_u32 v14, s21, v3',
      'v_bfe_u32 v15, v14, 2, 2',
      'v_and_b32 v36, 3, v12',
      'v_xor_b32 v15, v15, v36',
      'v_lshlrev_b32 v15, 4, v15',
      'v_lshl_add_u32 v15, v14, 6, v15',
      'v_lshrrev_b32 v36, 2, v12',
      'v_lshl_add_u32 v36, v2, 2, v36',
      'v_lshl_add_u32 v15, v36, 14, v15',
      's_lshr_b32 s24, s2, 5', 's_lshl_b32 s24, s24, 19',
      's_bfe_u32 s25, s2, 0x30002', 's_lshl_b32 s25, s25, 11',
      's_add_u32 s24, s24, s25', 's_add_u32 s25, s24, 0x8000')
    a('v_lshlrev_b32 v37, 5, v3', 'v_lshl_add_u32 v38, v2, 2, v37')
    a(f's_waitcnt vmcnt({NPF})')
    for i in range(8):
        a(f'v_lshlrev_b32 v{16+2*i}, 16, v{4+i}', f'v_and_b32 v{17+2*i}, 0xffff0000, v{4+i}')
    def red8(r):
        a(f'v_add_f32_dpp v{r}, v{r}, v{r} quad_perm:[1,0,3,2] row_mask:0xf bank_mask:0xf',
          f'v_add_f32_dpp v{r}, v{r}, v{r} quad_perm:[2,3,0,1] row_mask:0xf bank_mask:0xf',
          f'v_add_f32_dpp v{r}, v{r}, v{r} row_half_mirror row_mask:0xf bank_mask:0xf')
    def cross(r, off):
        a(f'ds_write_b32 v38, v{r} offset:{off}', 's_waitcnt lgkmcnt(0)', 's_barrier',
          f'ds_read_b128 v[40:43], v37 offset:{off}', f'ds_read_b128 v[44:47], v37 offset:{off+16}',
          's_waitcnt lgkmcnt(0)',
          'v_pk_add_f32 v[40:41], v[40:41], v[42:43]', 'v_pk_add_f32 v[44:45], v[44:45], v[46:47]',
          'v_pk_add_f32 v[40:41], v[40:41], v[44:45]', f'v_add_f32 v{r}, v40, v41',
          f'v_mul_f32 v{r}, {hx(f2u(1.0/1024))}, v{r}')
    a('v_pk_add_f32 v[40:41], v[16:17], v[18:19]', 'v_pk_add_f32 v[42:43], v[20:21], v[22:23]',
      'v_pk_add_f32 v[44:45], v[24:25], v[26:27]', 'v_pk_add_f32 v[46:47], v[28:29], v[30:31]',
      'v_pk_add_f32 v[40:41], v[40:41], v[42:43]', 'v_pk_add_f32 v[44:45], v[44:45], v[46:47]',
      'v_pk_add_f32 v[40:41], v[40:41], v[44:45]', 'v_add_f32 v39, v40, v41')
    red8(39); cross(39, 0)
    a('v_mov_b32 v48, 0', 'v_mov_b32 v49, 0')
    for i in range(8):
        a(f'v_pk_add_f32 v[40:41], v[{16+2*i}:{17+2*i}], v[38:39] op_sel:[0,1] op_sel_hi:[1,1] neg_lo:[0,1] neg_hi:[0,1]',
          'v_pk_fma_f32 v[48:49], v[40:41], v[40:41], v[48:49]')
    a('v_add_f32 v48, v48, v49')
    red8(48); cross(48, 256)
    def rbf(r):
        a(f'v_cvt_pk_bf16_f32 v{r}, v{r}, v{r}', f'v_and_b32 v{r}, 0xffff0000, v{r}')
    rbf(39); rbf(48)
    a(f'v_add_f32 v48, {hx(f2u(1e-5))}, v48'); rbf(48)
    a('v_sqrt_f32 v48, v48'); rbf(48)
    a('v_rcp_f32 v48, v48')
    for i in range(8):
        a(f'v_pk_add_f32 v[40:41], v[{16+2*i}:{17+2*i}], v[38:39] op_sel:[0,1] op_sel_hi:[1,1] neg_lo:[0,1] neg_hi:[0,1]',
          'v_cvt_pk_bf16_f32 v42, v40, v41',
          'v_lshlrev_b32 v40, 16, v42', 'v_and_b32 v41, 0xffff0000, v42',
          'v_pk_mul_f32 v[40:41], v[40:41], v[48:49] op_sel_hi:[1,0]',
          f'v_cvt_pk_bf16_f32 v{4+i}, v40, v41')
    a('buffer_store_dwordx4 v[4:7], v15, s[12:15], s24 offen',
      'buffer_store_dwordx4 v[8:11], v15, s[12:15], s25 offen')
    a('v_cmp_gt_u32 vcc, 76, v0',
      's_and_saveexec_b64 s[22:23], vcc',
      's_cbranch_execz L1_done',
      'buffer_store_dwordx4 v[32:35], v54, s[16:19], s20 offen')
    a('L1_done:', 's_endpgm')
    return a.finish(), descriptor('ln_kernel', 56, 56, 48)

def softmax_pair(a, P, E, T, OP, ON, sL):
    for i in range(8):
        a(f'v_cvt_pk_bf16_f32 v{T}, v{P+2*i}, v{P+2*i+1}',
          f'v_lshlrev_b32 v{P+2*i}, 16, v{T}', f'v_and_b32 v{P+2*i+1}, 0xffff0000, v{T}')
    mx, mn, t0, t1 = T, T + 2, T + 4, T + 5
    a(f'v_max3_f32 v{mx}, v{P}, v{P+1}, v{P+2}', f'v_min3_f32 v{mn}, v{P}, v{P+1}, v{P+2}')
    for i in range(3, 15, 2):
        a(f'v_max3_f32 v{mx}, v{mx}, v{P+i}, v{P+i+1}', f'v_min3_f32 v{mn}, v{mn}, v{P+i}, v{P+i+1}')
    a(f'v_max_f32 v{mx}, v{mx}, v{P+15}', f'v_min_f32 v{mn}, v{mn}, v{P+15}')
    a(f'v_mov_b32 v{t0}, v{mx}', f'v_mov_b32 v{t1}, v{mn}',
      f'v_permlane32_swap_b32 v{mx}, v{t0}', f'v_permlane32_swap_b32 v{mn}, v{t1}',
      f'v_max_f32 v{mx}, v{mx}, v{t0}', f'v_min_f32 v{mn}, v{mn}, v{t1}',
      f'v_mul_f32 v{mx}, s{sL}, v{mx}', f'v_mul_f32 v{mn}, s{sL}, v{mn}')
    for i in range(8):
        a(f'v_pk_fma_f32 v[{E+2*i}:{E+2*i+1}], v[{P+2*i}:{P+2*i+1}], s[{sL}:{sL+1}], v[{mx}:{mx+1}] op_sel_hi:[1,1,0] neg_lo:[0,0,1] neg_hi:[0,0,1]',
          f'v_pk_fma_f32 v[{P+2*i}:{P+2*i+1}], v[{P+2*i}:{P+2*i+1}], s[{sL}:{sL+1}], v[{mn}:{mn+1}] op_sel_hi:[1,1,0] neg_lo:[1,0,0] neg_hi:[1,0,0]')
    for i in range(16):
        a(f'v_exp_f32 v{E+i}, v{E+i}', f'v_exp_f32 v{P+i}, v{P+i}')
    sp, sn = T, T + 2
    a(f'v_pk_add_f32 v[{sp}:{sp+1}], v[{E}:{E+1}], v[{E+2}:{E+3}]', f'v_pk_add_f32 v[{sn}:{sn+1}], v[{P}:{P+1}], v[{P+2}:{P+3}]')
    for i in range(2, 8):
        a(f'v_pk_add_f32 v[{sp}:{sp+1}], v[{sp}:{sp+1}], v[{E+2*i}:{E+2*i+1}]',
          f'v_pk_add_f32 v[{sn}:{sn+1}], v[{sn}:{sn+1}], v[{P+2*i}:{P+2*i+1}]')
    a(f'v_add_f32 v{sp}, v{sp}, v{sp+1}', f'v_add_f32 v{sn}, v{sn}, v{sn+1}',
      f'v_mov_b32 v{t0}, v{sp}', f'v_mov_b32 v{t1}, v{sn}',
      f'v_permlane32_swap_b32 v{sp}, v{t0}', f'v_permlane32_swap_b32 v{sn}, v{t1}',
      f'v_add_f32 v{sp}, v{sp}, v{t0}', f'v_add_f32 v{sn}, v{sn}, v{t1}',
      f'v_rcp_f32 v{sp}, v{sp}', f'v_rcp_f32 v{sn}, v{sn}')
    for i in range(8):
        a(f'v_pk_mul_f32 v[{E+2*i}:{E+2*i+1}], v[{E+2*i}:{E+2*i+1}], v[{sp}:{sp+1}] op_sel_hi:[1,0]',
          f'v_pk_mul_f32 v[{P+2*i}:{P+2*i+1}], v[{P+2*i}:{P+2*i+1}], v[{sn}:{sn+1}] op_sel_hi:[1,0]')
    for i in range(8):
        a(f'v_cvt_pk_bf16_f32 v{OP+i}, v{E+2*i}, v{E+2*i+1}', f'v_cvt_pk_bf16_f32 v{ON+i}, v{P+2*i}, v{P+2*i+1}')

def geglu(a, G, T, O, sC1, vC0):
    for i in range(4):
        g = G + 2 * i; t = T + 2 * i
        a(f'v_pk_mul_f32 v[{t}:{t+1}], v[{g}:{g+1}], v[{g}:{g+1}]')
    for i in range(4):
        t = T + 2 * i
        a(f'v_pk_fma_f32 v[{t}:{t+1}], v[{t}:{t+1}], s[{sC1}:{sC1+1}], v[{vC0}:{vC0+1}]')
    for i in range(4):
        g = G + 2 * i; t = T + 2 * i
        a(f'v_pk_mul_f32 v[{t}:{t+1}], v[{t}:{t+1}], v[{g}:{g+1}]')
    for i in range(8):
        a(f'v_exp_f32 v{T+i}, v{T+i}')
    for i in range(4):
        g = G + 2 * i; t = T + 2 * i
        a(f'v_pk_mul_f32 v[{g}:{g+1}], v[{g}:{g+1}], v[{g+8}:{g+9}]',
          f'v_pk_add_f32 v[{t}:{t+1}], v[{t}:{t+1}], 1.0 op_sel_hi:[1,0]')
    for i in range(8):
        a(f'v_rcp_f32 v{T+i}, v{T+i}')
    for i in range(4):
        g = G + 2 * i; t = T + 2 * i
        a(f'v_pk_mul_f32 v[{g}:{g+1}], v[{g}:{g+1}], v[{t}:{t+1}]')
    for i in range(4):
        a(f'v_cvt_pk_bf16_f32 v{O+i}, v{G+2*i}, v{G+2*i+1}')

def interleave(main, fill, per):
    out = []; fi = 0
    for k, m in enumerate(main):
        out.append(m)
        n = per[k] if k < len(per) else 0
        for _ in range(n):
            if fi < len(fill):
                out.append(fill[fi]); fi += 1
    out.extend(fill[fi:])
    return out

X_BASE = 0; X_ST = 16384
GU_BASE = 65536; GU_ST = 14592; UP_OFF = 7168 + 128
QKV_BASE = GU_BASE + 4 * GU_ST; QKV_ST = 6144
WPHI_BASE = QKV_BASE + 4 * QKV_ST
K2_LDS = WPHI_BASE + 2048
PT_ROW = 136
PT_BASE = 0; PT_W = 32 * PT_ROW * 2
KVP_BASE = 40960; KVP_W = 8448

def k2():
    a = Asm(); header(a, 'gemm1_kernel')
    ACC = 96
    acc = lambda nb, tt: ACC + (nb * 2 + tt) * 16
    SET = [40, 68]
    xf = lambda s, tt: SET[s] + tt * 4
    wf = lambda s, nb: SET[s] + 8 + nb * 4
    vDX, vD2, vD3, vD4, vRX0, vRX1, vRG, vRQ, vLANE, vHH = 1, 2, 3, 4, 5, 6, 7, 8, 9, 10
    a('s_cmp_ge_u32 s2, 256', 's_cbranch_scc1 L2_done')
    for i in range(6): stamp(a, i)
    a('s_load_dwordx4 s[40:43], s[0:1], 8',
      's_load_dwordx4 s[44:47], s[0:1], 40',
      's_load_dwordx2 s[48:49], s[0:1], 80',
      's_load_dwordx2 s[68:69], s[0:1], 24',
      's_load_dwordx2 s[70:71], s[0:1], 56')
    a('v_lshrrev_b32 v11, 6, v0', f'v_and_b32 v{vLANE}, 63, v0', 'v_readfirstlane_b32 s50, v11')
    a('s_and_b32 s3, s2, 7', 's_lshr_b32 s4, s2, 3',
      's_and_b32 s51, s4, 7',
      's_lshr_b32 s4, s4, 3', 's_lshl_b32 s3, s3, 2', 's_add_u32 s52, s3, s4')
    a('s_and_b32 s53, s50, 3', 's_lshr_b32 s54, s50, 2')
    a(f'v_lshrrev_b32 v{vHH}, 5, v{vLANE}')
    a(f'v_lshlrev_b32 v{vDX}, 4, v{vLANE}', 's_lshl_b32 s5, s50, 11', f'v_add_u32 v{vDX}, s5, v{vDX}')
    a('v_mul_u32_u24 v11, 4682, v0', 'v_lshrrev_b32 v11, 16, v11',
      'v_mul_u32_u24 v12, 14, v11', 'v_sub_u32 v12, v0, v12',
      'v_mul_u32_u24 v11, 7168, v11', 'v_lshl_add_u32 v11, v12, 4, v11',
      's_mul_i32 s5, s52, 224', f'v_add_u32 v{vD2}, s5, v11', f'v_mov_b32 v{vD3}, v{vD2}')
    a(f'v_lshrrev_b32 v11, 2, v{vLANE}', 'v_mul_u32_u24 v11, 6144, v11',
      f'v_and_b32 v12, 3, v{vLANE}', 'v_lshl_add_u32 v11, v12, 4, v11',
      's_lshl_b32 s5, s52, 6', 'v_add_u32 v11, s5, v11')
    a('s_lshr_b32 s5, s53, 1', 's_lshl_b32 s5, s5, 11', 's_and_b32 s6, s53, 1', 's_mul_i32 s6, s6, %d' % (16 * 6144),
      's_add_u32 s5, s5, s6', f'v_add_u32 v{vD4}, s5, v11')
    a('s_waitcnt lgkmcnt(0)')
    a('s_lshl_b32 s5, s51, 19', 's_add_u32 s8, s48, s5', 's_addc_u32 s9, s49, 0', 's_and_b32 s9, s9, 0xffff',
      's_mov_b32 s10, 0x80000', 's_mov_b32 s11, 0x20000')
    srd(a, 12, 44, 45, 1024 * 7168); srd(a, 16, 46, 47, 1024 * 7168); srd(a, 20, 40, 41, 1024 * 6144)
    a('s_mov_b32 s27, %d' % (32 * 7168),
      's_lshl_b32 s5, s50, 10',
      's_add_u32 s29, s5, %d' % GU_BASE, 's_add_u32 s30, s5, %d' % (GU_BASE + UP_OFF),
      's_lshl_b32 s5, s53, 10', 's_add_u32 s31, s5, %d' % QKV_BASE,
      's_lshl_b32 s28, s50, 11',
      's_mov_b32 s33, %d' % GU_ST)
    a('s_cmp_lg_u32 s50, 7', 's_cbranch_scc1 L2_not7')
    a('s_mov_b32 s12, s20', 's_mov_b32 s13, s21', 's_mov_b32 s14, s22',
      's_mov_b32 s16, s20', 's_mov_b32 s17, s21', 's_mov_b32 s18, s22',
      's_mov_b32 s27, %d' % (32 * 6144),
      's_mov_b32 s29, %d' % (QKV_BASE + 4096), 's_mov_b32 s30, %d' % (QKV_BASE + 5120),
      's_mov_b32 s33, %d' % QKV_ST,
      f'v_add_u32 v{vD2}, 4096, v11', f'v_add_u32 v{vD3}, {4096 + 16 * 6144}, v11')
    a('L2_not7:')
    a('s_mov_b32 s32, 0', 's_lshl_b32 s34, s33, 1', 's_add_u32 s35, s34, s33')
    a('s_mov_b32 s24, 0', 's_mov_b32 s25, 0', 's_mov_b32 s26, 0')
    a('s_and_b32 s5, s50, 6', 's_cmp_lg_u32 s5, 4', 's_cbranch_scc1 L2_nophi')
    srd(a, 56, 42, 43, 65536)
    a('s_and_b32 s5, s50, 1', 's_lshl_b32 s5, s5, 10', 's_lshl_b32 s6, s52, 11', 's_add_u32 s6, s6, s5',
      's_add_u32 m0, s5, %d' % WPHI_BASE,
      f'v_lshlrev_b32 v12, 4, v{vLANE}',
      'buffer_load_dwordx4 v12, s[56:59], s6 offen lds')
    a('L2_nophi:')

    a('s_mov_b32 s58, %d' % (3584 * 2048), 's_movk_i32 s5, 28672',
      's_cmp_eq_u32 s50, 4', 's_cselect_b32 s56, s68, s70', 's_cselect_b32 s57, s69, s71',
      's_cselect_b32 s58, %d, s58' % (1024 * 2048), 's_cselect_b32 s5, 8192, s5',
      's_and_b32 s57, s57, 0xffff', 's_mov_b32 s59, 0x20000', 's_mul_i32 s38, s2, s5',
      'v_and_b32 v38, 255, v0', 'v_min_u32 v38, 223, v38', 'v_lshlrev_b32 v38, 7, v38',
      's_lshr_b32 s37, s2, 5', 's_add_u32 s37, s37, %d' % PFIT, 's_and_b32 s37, s37, 7', 's_cmp_gt_u32 s50, 4', 's_cselect_b32 s37, -1, s37')
    a('s_cmp_lt_u32 s50, 4', 's_cselect_b32 s60, s44, s46', 's_cselect_b32 s61, s45, s47', 's_and_b32 s61, s61, 0xffff',
      's_mov_b32 s62, %d' % (1024 * 7168), 's_mov_b32 s63, 0x20000',
      's_lshr_b32 s5, s2, 3', 's_and_b32 s6, s2, 7',
      's_mul_i32 s39, s5, %d' % (32 * 7168), 's_mul_i32 s7, s6, 896', 's_add_u32 s39, s39, s7',
      's_mul_i32 s55, s5, %d' % (32 * 6144), 's_lshl_b32 s7, s6, 8', 's_add_u32 s55, s55, s7',
      'v_lshrrev_b32 v36, 7, v38', 'v_mul_u32_u24 v37, 9363, v36', 'v_lshrrev_b32 v37, 16, v37',
      'v_mul_u32_u24 v37, %d, v37' % (7168 - 896), 'v_add_u32 v36, v38, v37',
      'v_min_u32 v37, 191, v0', 'v_mul_u32_u24 v39, 10923, v37', 'v_lshrrev_b32 v39, 16, v39',
      'v_mul_u32_u24 v39, 6, v39', 'v_sub_u32 v39, v37, v39', 'v_sub_u32 v37, v37, v39', 'v_lshlrev_b32 v37, 10, v37',
      'v_and_b32 v35, 1, v39', 'v_lshl_add_u32 v37, v35, 7, v37', 'v_lshrrev_b32 v39, 1, v39', 'v_lshl_add_u32 v37, v39, 11, v37',
      's_lshr_b32 s64, s2, 5', f's_sub_u32 s64, s64, {LA}', 's_max_i32 s64, s64, 0', f's_cmp_lt_u32 s5, {max(R1 // 32, 3)}', 's_cselect_b32 s64, -1, s64')
    if 'nopf1' in EXP: a('s_mov_b32 s64, -1')
    if 'nopf' in EXP: a('s_mov_b32 s37, -1')

    def dma(slot, five):
        g = []
        g.append([f's_add_u32 m0, s28, {X_BASE + slot * X_ST}', f'buffer_load_dwordx4 v{vDX}, s[8:11], s24 offen lds'])
        g.append([f'buffer_load_dwordx4 v{vDX}, s[8:11], s24 offen offset:1024 lds', 's_add_u32 s24, s24, 16384'])
        g.append([f's_add_u32 m0, s29, s{32+slot}', f'buffer_load_dwordx4 v{vD2}, s[12:15], s25 offen lds'])
        g.append([f's_add_u32 m0, s30, s{32+slot}', f'buffer_load_dwordx4 v{vD3}, s[16:19], s25 offen lds', 's_add_u32 s25, s25, s27'])
        if five:
            g.append([f's_add_u32 m0, s31, {slot * QKV_ST}', f'buffer_load_dwordx4 v{vD4}, s[20:23], s26 offen lds',
                      's_add_u32 s26, s26, %d' % (32 * 6144)])
        return g

    a(f'v_and_b32 v11, 31, v{vLANE}', 'v_bfe_u32 v12, v11, 2, 2', f'v_xor_b32 v12, v12, v{vHH}',
      'v_lshlrev_b32 v12, 4, v12', 'v_lshl_add_u32 v12, v11, 6, v12',
      's_lshl_b32 s5, s53, 12', f'v_add_u32 v{vRX0}, s5, v12', f'v_xor_b32 v{vRX1}, 32, v{vRX0}')
    a(f'v_bfe_u32 v11, v{vLANE}, 2, 2', f'v_lshl_add_u32 v11, v{vHH}, 3, v11',
      f'v_and_b32 v12, 3, v{vLANE}', 'v_lshlrev_b32 v12, 3, v12',
      f'v_bfe_u32 v13, v{vLANE}, 4, 1')
    a(f'v_mul_u32_u24 v{vRG}, 224, v11', f'v_add_u32 v{vRG}, v{vRG}, v12',
      f'v_mul_u32_u24 v14, {UP_OFF}, v13', f'v_add_u32 v{vRG}, v{vRG}, v14', f'v_add_u32 v{vRG}, {GU_BASE}, v{vRG}')
    a(f'v_lshlrev_b32 v{vRQ}, 6, v11', f'v_add_u32 v{vRQ}, v{vRQ}, v12', f'v_lshl_add_u32 v{vRQ}, v13, 5, v{vRQ}',
      f'v_add_u32 v{vRQ}, {QKV_BASE}, v{vRQ}')

    def reads(wn, s, slot, c):
        r = []
        for tt in range(2):
            d = xf(s, tt)
            r.append(f'ds_read_b128 v[{d}:{d+3}], v{vRX1 if c else vRX0} offset:{X_BASE + slot * X_ST + tt * 2048}')
        for nb in range(5):
            d = wf(s, nb)
            for p in range(2):
                if wn == 0 and nb < 3:
                    off = slot * QKV_ST + nb * 2048 + c * 1024 + p * 256
                    r.append(f'ds_read_b64_tr_b16 v[{d+2*p}:{d+2*p+1}], v{vRQ} offset:{off}')
                else:
                    seg = nb - 3 if wn == 0 else nb + 2
                    off = slot * GU_ST + (c * 16 + p * 4) * 224 + seg * 32
                    r.append(f'ds_read_b64_tr_b16 v[{d+2*p}:{d+2*p+1}], v{vRG} offset:{off}')
        return r
    def mfmas(wn, s):
        m = []
        for nb in range(5):
            for tt in range(2):
                A, B = wf(s, nb), xf(s, tt)
                if wn == 0 and nb == 2: A, B = B, A
                d = acc(nb, tt)
                m.append(f'v_mfma_f32_32x32x16_bf16 v[{d}:{d+15}], v[{A}:{A+3}], v[{B}:{B+3}], v[{d}:{d+15}]')
        return m

    a('s_cmp_lg_u32 s54, 0', 's_cbranch_scc1 L2_wn1')
    for wn in range(2):
        five = (wn == 0)
        n = 5 if five else 4
        if wn == 1: a('L2_wn1:')
        for st in range(3):
            for g in dma(st, five): a(*g)
        for r in range(ACC, 256): a(f'v_mov_b32 v{r}, 0')
        for r in range(SET[1], SET[1] + 28): a(f'v_mov_b32 v{r}, 0')
        a('s_mov_b32 s36, 0')
        body = []
        for slot in range(4):
            body.append(f's_waitcnt vmcnt({2*n}) lgkmcnt(0)')
            body.append('s_barrier')
            if slot == 2: body += ['s_cmp_eq_u32 s36, s37', f's_cbranch_scc1 L2_pf{wn}', f'L2_pfr{wn}:']
            if slot == 0: body += ['s_cmp_eq_u32 s36, s64', f's_cbranch_scc1 L2_pa{wn}', f'L2_par{wn}:']
            g = dma((slot + 3) & 3, five)
            if 'nodma' in EXP: g = [[], [], []]
            if 'nodmax' in EXP: g = [[], []] + dma((slot + 3) & 3, five)[2:]
            if 'nodmaw' in EXP: g = dma((slot + 3) & 3, five)[:2] + [[]]
            rd = (lambda *x: []) if 'nolds' in EXP else reads
            fa = rd(wn, 0, slot, 0) + g[0] + g[1]
            body += interleave(mfmas(wn, 1), fa, [2] * 10)
            body.append('s_waitcnt lgkmcnt(0)')
            fb = rd(wn, 1, slot, 1) + sum(g[2:], [])
            body += interleave(mfmas(wn, 0), fb, [2] * 10)
        body += ['s_add_u32 s36, s36, 1', 's_cmp_lt_u32 s36, 8', f's_cbranch_scc1 L2_loop{wn}']
        check_loop([x for x in body if not x.endswith(':')])
        stamp(a, 1)
        if PROF: a(f's_waitcnt vmcnt({2*n})', 's_barrier')
        if 'nolds' in EXP: a('s_waitcnt vmcnt(0)', 's_barrier', *reads(wn, 0, 0, 0), *reads(wn, 1, 0, 1))
        stamp(a, 2)
        a(f'L2_loop{wn}:'); a(*body)
        a('s_waitcnt lgkmcnt(0)')
        a(*mfmas(wn, 1))
        a('s_waitcnt vmcnt(0)', 's_barrier')
        stamp(a, 3)
        srd(a, 8, 48, 49, 16 * ACT_MT, ACT_OFF)
        a('s_lshl_b32 s5, s51, 1', 's_lshr_b32 s6, s53, 1', 's_add_u32 s60, s5, s6',
          's_mul_i32 s5, s60, %d' % ACT_MT, 's_and_b32 s6, s53, 1', 's_lshl_b32 s61, s6, 11', 's_add_u32 s5, s5, s61',
          's_mul_i32 s6, s52, %d' % (7 * 4096), 's_add_u32 s62, s5, s6')
        vL16 = 11
        a(f'v_lshlrev_b32 v{vL16}, 4, v{vLANE}')
        a('s_mov_b32 s64, %s' % hx(f2u(LOG2E)), 's_mov_b32 s65, %s' % hx(f2u(LOG2E)))
        c0 = -2.0 * 0.7978845608028654 * LOG2E
        a('s_mov_b32 s66, %s' % hx(f2u(c0 * 0.044715)), 's_mov_b32 s67, %s' % hx(f2u(c0 * 0.044715)),
          'v_mov_b32 v12, %s' % hx(f2u(c0)), 'v_mov_b32 v13, %s' % hx(f2u(c0)))
        def gu_block(nb, tt, k):
            seg = nb - 3 if wn == 0 else nb + 2
            O = 16 + 4 * (k & 1)
            geglu(a, acc(nb, tt), 24, O, 66, 12)
            a(f's_add_u32 s63, s62, {seg * 4096}',
              f'buffer_store_dwordx4 v[{O}:{O+3}], v{vL16}, s[8:11], s63 offen offset:{tt * 1024}' + K2ST)
        if wn == 0:
            srd(a, 12, 48, 49, 0x400000, QF_OFF)
            a('s_lshl_b32 s5, s60, 18', 's_lshl_b32 s6, s52, 13', 's_add_u32 s5, s5, s6', 's_lshl_b32 s6, s61, 1', 's_add_u32 s63, s5, s6')
            for tt in range(2):
                q = acc(0, tt); O = 40 + 8 * tt
                for i in range(8): a(f'v_cvt_pk_bf16_f32 v{O+i}, v{q+2*i}, v{q+2*i+1}')
                for c in range(2):
                    a(f'buffer_store_dwordx4 v[{O+4*c}:{O+4*c+3}], v{vL16}, s[12:15], s63 offen offset:{tt * 2048 + c * 1024}' + K2ST)
            WP = 16
            a(f'v_bfe_u32 v14, v{vLANE}, 2, 2', f'v_lshl_add_u32 v14, v{vHH}, 2, v14',
              f'v_and_b32 v15, 3, v{vLANE}', 'v_lshlrev_b32 v15, 3, v15',
              f'v_bfe_u32 v24, v{vLANE}, 4, 1', 'v_lshl_add_u32 v15, v24, 5, v15',
              'v_lshl_add_u32 v25, v14, 6, v15', f'v_add_u32 v25, {WPHI_BASE}, v25')
            for c in range(2):
                for p in range(2):
                    a(f'ds_read_b64_tr_b16 v[{WP+4*c+2*p}:{WP+4*c+2*p+1}], v25 offset:{(16*c + 8*p) * 64}')
            a('s_mul_i32 s5, s53, %d' % PT_W,
              f'v_and_b32 v24, 31, v{vLANE}', f'v_mul_u32_u24 v24, {PT_ROW}, v24', f'v_lshl_add_u32 v24, v{vHH}, 3, v24',
              'v_add_u32 v24, s5, v24',
              f'v_mul_u32_u24 v25, {PT_ROW}, v14', 'v_add_u32 v25, v25, v15', 'v_add_u32 v25, s5, v25')
            KVA = acc(0, 0)
            ZA = 56
            ONES = 88
            for i in range(4): a(f'v_mov_b32 v{ONES+i}, 0x3f803f80')
            a('s_waitcnt lgkmcnt(0)')
            for tt in range(2):
                k = acc(1, tt); v = acc(2, tt)
                KB = 40
                for i in range(8): a(f'v_cvt_pk_bf16_f32 v{KB+i}, v{k+2*i}, v{k+2*i+1}')
                a(f'v_mfma_f32_32x32x16_bf16 v[{k}:{k+15}], v[{WP}:{WP+3}], v[{KB}:{KB+3}], 0',
                  f'v_mfma_f32_32x32x16_bf16 v[{k}:{k+15}], v[{WP+4}:{WP+7}], v[{KB+4}:{KB+7}], v[{k}:{k+15}]')
                VB = 48
                for i in range(8): a(f'v_cvt_pk_bf16_f32 v{VB+i}, v{v+2*i}, v{v+2*i+1}')
                softmax_pair(a, k, v, 26, 40, 32, 64)
                boff = tt * 32 * PT_ROW
                for aa in range(4):
                    a(f'ds_write_b64 v24, v[{40+2*aa}:{41+2*aa}] offset:{boff + aa * 16}',
                      f'ds_write_b64 v24, v[{32+2*aa}:{33+2*aa}] offset:{boff + 64 + aa * 16}')
                a('s_waitcnt lgkmcnt(0)')
                for ft in range(2):
                    for c in range(2):
                        for p in range(2):
                            d = k + (ft * 2 + c) * 4 + 2 * p
                            a(f'ds_read_b64_tr_b16 v[{d}:{d+1}], v25 offset:{boff + (16*c + 8*p) * PT_ROW + ft * 64}')
                a('s_waitcnt lgkmcnt(0)')
                for ft in range(2):
                    for c in range(2):
                        A = k + (ft * 2 + c) * 4
                        first = (tt == 0 and c == 0)
                        d = KVA + 16 * ft; z = ZA + 16 * ft
                        a(f'v_mfma_f32_32x32x16_bf16 v[{d}:{d+15}], v[{A}:{A+3}], v[{VB+4*c}:{VB+4*c+3}], ' + ('0' if first else f'v[{d}:{d+15}]'))
                        a(f'v_mfma_f32_32x32x16_bf16 v[{z}:{z+15}], v[{A}:{A+3}], v[{ONES}:{ONES+3}], ' + ('0' if first else f'v[{z}:{z+15}]'))
            a('s_mul_i32 s5, s53, %d' % KVP_W, 's_add_u32 s5, s5, %d' % KVP_BASE,
              f'v_add_u32 v24, s5, v{vL16}', f'v_lshlrev_b32 v25, 4, v{vHH}', 'v_add_u32 v25, s5, v25')
            for ft in range(2):
                for aa in range(4):
                    d = KVA + 16 * ft + 4 * aa
                    a(f'ds_write_b128 v24, v[{d}:{d+3}] offset:{(ft * 4 + aa) * 1024}')
            a('s_mov_b32 exec_lo, 1', 's_mov_b32 exec_hi, 1')
            for ft in range(2):
                for aa in range(4):
                    z = ZA + 16 * ft + 4 * aa
                    a(f'ds_write_b128 v25, v[{z}:{z+3}] offset:{8192 + (32 * ft + 8 * aa) * 4}')
            a('s_mov_b64 exec, -1')
            a('s_waitcnt lgkmcnt(0)')
        else:
            k = 0
            for nb in range(3):
                for tt in range(2):
                    gu_block(nb, tt, k); k += 1
        a('s_barrier')
        stamp(a, 4)
        srd(a, 16, 48, 49, KV_SIZE, KV_OFF)
        a('s_mul_i32 s63, s52, %d' % KV_HEAD, 'v_lshlrev_b32 v14, 2, v0', f'v_add_u32 v15, {KVP_BASE}, v14')
        for q in range(4):
            for p in range(4):
                a(f'ds_read_b32 v{40 + 4*q + p}, v15 offset:{p * KVP_W + q * 2048}')
        if wn == 0:
            a('s_cmp_lg_u32 s50, 0', 's_cbranch_scc1 L2_noz')
            for p in range(4):
                a(f'ds_read_b32 v{56 + p}, v15 offset:{p * KVP_W + 8192}')
            a('s_waitcnt lgkmcnt(0)', 'v_add_f32 v56, v56, v57', 'v_add_f32 v58, v58, v59', 'v_add_f32 v56, v56, v58',
              's_add_u32 s5, s63, 8192',
              'buffer_atomic_add_f32 v56, v14, s[16:19], s5 offen')
            a('L2_noz:')
        a('s_waitcnt lgkmcnt(0)')
        for q in range(4):
            b = 40 + 4 * q
            a(f'v_add_f32 v{b}, v{b}, v{b+1}', f'v_add_f32 v{b+2}, v{b+2}, v{b+3}', f'v_add_f32 v{b}, v{b}, v{b+2}')
        a('s_add_u32 s5, s63, 4096')
        for q in range(4):
            a(f'buffer_atomic_add_f32 v{40+4*q}, v14, s[16:19], {"s63" if q < 2 else "s5"} offen offset:{(q & 1) * 2048}')
        k = 0
        for nb in range(3, 5):
            for tt in range(2):
                gu_block(nb, tt, k); k += 1
        if PROF: a('s_waitcnt vmcnt(0)')
        stamp(a, 5)
        stamp_out(a, 1, 48, 50)
        a('s_endpgm')
        a(f'L2_pf{wn}:', 'buffer_load_dword v39, v38, s[56:59], s38 offen', f's_branch L2_pfr{wn}')
        a(f'L2_pa{wn}:', 'buffer_load_dword v39, v36, s[60:63], s39 offen')
        if wn == 0: a('buffer_load_dword v39, v37, s[20:23], s55 offen')
        a(f's_branch L2_par{wn}')
    a('L2_done:', 's_endpgm')
    return a.finish(), descriptor('gemm1_kernel', 256, 256, 96)

P2 = int(os.environ.get('P2', '2')); E1 = int(os.environ.get('E1', '3')); DEFER = int(os.environ.get('DEFER', '6'))
RING = 6
STM = int(os.environ.get('STM', '0'))
KVL_BASE = RING * 16384; KVL_W = 8192 + 1024 + 2048
K3_LDS = KVL_BASE + KVL_W

def k3():
    a = Asm(); header(a, 'gemm2_kernel')
    acc = lambda b: 192 + b * 16
    H = lambda slot, c: 96 + (slot % RING) * 16 + c * 4
    WS = [64, 80]
    vLANE, vHH, vL16, vDW, vPOLL, vZERO, vX, vR, vDH = 1, 2, 3, 4, 6, 7, 8, 16, 12
    a('s_cmp_ge_u32 s2, 256', 's_cbranch_scc1 L3_done')
    for i in range(6): stamp(a, i)
    a('s_load_dwordx2 s[40:41], s[0:1], 0',
      's_load_dwordx4 s[44:47], s[0:1], 16',
      's_load_dwordx8 s[48:55], s[0:1], 56')
    a('v_lshrrev_b32 v11, 6, v0', f'v_and_b32 v{vLANE}, 63, v0', 'v_readfirstlane_b32 s56, v11')
    a('s_and_b32 s59, s2, 3',
      's_and_b32 s5, s2, 4', 's_lshr_b32 s6, s2, 6', 's_add_u32 s57, s5, s6',
      's_bfe_u32 s58, s2, 0x30003',
      's_lshl_b32 s60, s59, 3', 's_add_u32 s60, s60, s58',
      's_lshr_b32 s61, s56, 2', 's_and_b32 s62, s56, 3')
    a(f'v_lshrrev_b32 v{vHH}, 5, v{vLANE}', f'v_lshlrev_b32 v{vL16}, 4, v{vLANE}', f'v_mov_b32 v{vZERO}, 0', f'v_mov_b32 v{vPOLL}, 0')
    a('s_lshl_b32 s34, s56, 10', 's_mul_i32 s7, s60, %d' % KV_HEAD, 's_add_u32 s63, s7, s34',
      's_lshl_b32 s5, s57, 19', 's_lshl_b32 s6, s61, 18', 's_add_u32 s5, s5, s6', 's_lshl_b32 s6, s60, 13', 's_add_u32 s5, s5, s6',
      's_lshl_b32 s6, s62, 11', 's_add_u32 s35, s5, s6')
    a('s_waitcnt lgkmcnt(0)')
    srd(a, 24, 54, 55, ZERO_SIZE, KV_OFF); srd(a, 20, 54, 55, 0x400000, QF_OFF)
    Q = 32
    a('s_add_u32 m0, s34, %d' % KVL_BASE, f'buffer_load_dwordx4 v{vL16}, s[24:27], s63 offen lds')
    for i in range(2):
        a(f'buffer_load_dwordx4 v[{Q+4*i}:{Q+4*i+3}], v{vL16}, s[20:23], s35 offen offset:{i * 1024}')
    a('s_cmp_ge_u32 s56, 2', 's_cbranch_scc1 L3_z')
    srd(a, 28, 44, 45, 65536)
    a('s_lshl_b32 s6, s60, 11', 's_add_u32 s6, s6, s34', 's_add_u32 m0, s34, %d' % (KVL_BASE + 9216),
      f'buffer_load_dwordx4 v{vL16}, s[28:31], s6 offen lds', 's_branch L3_z2')
    a('L3_z:')
    a('s_add_u32 s6, s7, 8192', 's_mov_b32 m0, %d' % (KVL_BASE + 8192), f'buffer_load_dwordx4 v{vL16}, s[24:27], s6 offen lds')
    a('L3_z2:')
    a('s_mul_i32 s5, s57, %d' % (2 * ACT_MT), 's_add_u32 s5, s5, %s' % hx(ACT_OFF),
      's_add_u32 s8, s54, s5', 's_addc_u32 s9, s55, 0', 's_and_b32 s9, s9, 0xffff', 's_mov_b32 s10, %d' % (2 * ACT_MT), 's_mov_b32 s11, 0x20000')
    srd(a, 12, 48, 49, 3584 * 2048)
    a(f'v_lshrrev_b32 v11, 4, v{vLANE}', 'v_lshlrev_b32 v10, 2, v11', f'v_and_b32 v9, 15, v{vLANE}', 'v_xor_b32 v10, v10, v9',
      'v_lshlrev_b32 v10, 4, v10', 'v_lshl_add_u32 v10, v11, 11, v10',
      's_lshl_b32 s5, s56, 14', 's_lshl_b32 s6, s58, 8', 's_add_u32 s5, s5, s6',
      f'v_add_u32 v{vDW}, s5, v10', f'v_add_u32 v{vDW+1}, 7168, v{vDW}')
    a('s_mul_i32 s5, s61, %d' % ACT_MT, 's_lshl_b32 s6, s62, 10', 's_add_u32 s5, s5, s6', f'v_add_u32 v{vDH}, s5, v{vL16}')
    for c in range(1, 4): a(f'v_add_u32 v{vDH+c}, {c * 4096}, v{vDH}')
    a('s_mul_i32 s32, s59, %d' % (14 * 131072), 's_mul_i32 s33, s59, %d' % (14 * 16384), 's_lshl_b32 s34, s56, 11')
    def ld(st):
        slot = st % RING
        g = [[f's_add_u32 m0, s34, {slot * 16384}', f'buffer_load_dwordx4 v{vDW}, s[12:15], s32 offen lds'],
             [f'buffer_load_dwordx4 v{vDW+1}, s[12:15], s32 offen offset:1024 lds', 's_add_u32 s32, s32, 0x20000']]
        for c in range(4):
            g.append([f'buffer_load_dwordx4 v[{H(slot,c)}:{H(slot,c)+3}], v{vDH+c}, s[8:11], s33 offen sc1'] + (['s_add_u32 s33, s33, 0x4000'] if c == 3 else []))
        return g
    PRE = 2; DIST = 4
    for st in range(PRE):
        for g in ld(st): a(*g)
    a(f'v_bfe_u32 v11, v{vLANE}, 2, 2',
      f'v_lshl_add_u32 v10, v{vHH}, 2, v11',
      f'v_and_b32 v30, 3, v{vLANE}', 'v_lshlrev_b32 v30, 3, v30',
      f'v_bfe_u32 v9, v{vLANE}, 4, 1', 'v_lshl_add_u32 v30, v9, 5, v30',
      'v_lshl_add_u32 v31, v10, 6, v30', f'v_add_u32 v31, {KVL_BASE}, v31',
      'v_lshl_add_u32 v30, v10, 8, v30',
      'v_xor_b32 v11, s59, v11',
      f'v_lshl_add_u32 v{vR}, v11, 6, v30')
    for b in range(1, 4): a(f'v_xor_b32 v{vR+b}, {b * 64}, v{vR}')
    for b in range(4): a(f'v_add_u32 v{vR+4+b}, 0x10000, v{vR+b}')
    a(f'v_add_u32 v10, {KVL_BASE}, v{vL16}', f'v_lshlrev_b32 v9, 4, v{vHH}', f'v_add_u32 v9, {KVL_BASE}, v9')
    for r in range(192, 256): a(f'v_mov_b32 v{r}, 0')
    a('s_mov_b32 s64, %s' % hx(f2u(LOG2E)), 's_mov_b32 s65, %s' % hx(f2u(LOG2E)))
    a('s_cmp_eq_u32 s56, 0', 's_cselect_b32 s37, 1, -1')
    a('s_lshl_b32 s5, s57, 2', 's_add_u32 s5, s5, s59', 's_lshl_b32 s66, s5, 7', 's_add_u32 s66, s66, %d' % FLAG_REL,
      's_lshl_b32 s5, s57, 3', 's_add_u32 s70, s5, s58',
      's_lshl_b32 s38, s70, 9', 's_add_u32 s38, s38, %d' % (FLAG_REL + 4096),
      's_lshl_b32 s5, s59, 7', 's_add_u32 s67, s38, s5')
    a(f's_waitcnt vmcnt({6 * PRE})', 's_barrier')
    if not STM: stamp(a, 1)
    o = Asm()
    PH = 40; WP = 56; KVF = 64; ZF = 160; T = 24
    for c in range(2):
        for p in range(2):
            o(f'ds_read_b64_tr_b16 v[{WP+4*c+2*p}:{WP+4*c+2*p+1}], v31 offset:{9216 + (16*c + 8*p) * 64}')
    for i in range(8): o(f'ds_read_b128 v[{KVF+4*i}:{KVF+4*i+3}], v10 offset:{i * 1024}')
    o('s_waitcnt lgkmcnt(8)')
    P = 80; E = 176
    o(f'v_mfma_f32_32x32x16_bf16 v[{PH}:{PH+15}], v[{WP}:{WP+3}], v[{Q}:{Q+3}], 0',
      f'v_mfma_f32_32x32x16_bf16 v[{PH}:{PH+15}], v[{WP+4}:{WP+7}], v[{Q+4}:{Q+7}], v[{PH}:{PH+15}]')
    for i in range(8): o(f'ds_read_b128 v[{ZF+4*i}:{ZF+4*i+3}], v9 offset:{8192 + i * 32}')
    o('s_waitcnt lgkmcnt(8)')
    for i in range(16): o(f'v_cvt_pk_bf16_f32 v{KVF+i}, v{KVF+2*i}, v{KVF+2*i+1}')
    o('s_waitcnt lgkmcnt(0)')
    for i in range(16): o(f'v_cvt_pk_bf16_f32 v{ZF+i}, v{ZF+2*i}, v{ZF+2*i+1}')
    softmax_pair(o, PH, E, T, P, P + 8, 64)
    for c in range(4):
        o(f'v_mfma_f32_32x32x16_bf16 v[{E}:{E+15}], v[{ZF+4*c}:{ZF+4*c+3}], v[{P+4*c}:{P+4*c+3}], ' + ('0' if c == 0 else f'v[{E}:{E+15}]'))
    for c in range(4):
        o(f'v_mfma_f32_32x32x16_bf16 v[{PH}:{PH+15}], v[{KVF+4*c}:{KVF+4*c+3}], v[{P+4*c}:{P+4*c+3}], ' + ('0' if c == 0 else f'v[{PH}:{PH+15}]'))
    o(f'v_add_f32 v24, {hx(f2u(1e-6))}, v{E}', 'v_rcp_f32 v24, v24')
    for r in range(4): o(f'v_mov_b32 v{H(5,3)+r}, 0')
    for i in range(8):
        o(f'v_pk_mul_f32 v[{PH+2*i}:{PH+2*i+1}], v[{PH+2*i}:{PH+2*i+1}], v[24:25] op_sel_hi:[1,0]')
    for r in range(WS[1], WS[1] + 16): o(f'v_mov_b32 v{r}, 0')
    for i in range(8):
        o(f'v_cvt_pk_bf16_f32 v{Q+i}, v{PH+2*i}, v{PH+2*i+1}')
    rest = sum([ld(st) for st in range(PRE, DIST)], [])
    n = len(o.L); step = max(1, (n - 40) // max(1, len(rest)))
    for k, ins in enumerate(o.L):
        a(ins)
        if rest and k >= 12 and (k - 12) % step == 0: a(*rest.pop(0))
    while rest: a(*rest.pop(0))
    a('s_lshl_b32 s5, s60, 13', 's_add_u32 s5, s5, %d' % (224 * 4096))
    a(f'buffer_store_dwordx4 v[{Q}:{Q+3}], v{vDH}, s[8:11], s5 offen sc1',
      f'buffer_store_dwordx4 v[{Q+4}:{Q+7}], v{vDH+1}, s[8:11], s5 offen sc1')
    a(f'v_and_b32 v{vX}, 31, v{vLANE}', f'v_lshlrev_b32 v{vX}, 11, v{vX}', f'v_lshl_add_u32 v{vX}, v{vHH}, 4, v{vX}',
      's_lshl_b32 s5, s57, 19', 's_lshl_b32 s6, s56, 16', 's_add_u32 s5, s5, s6', 's_lshl_b32 s6, s58, 8', 's_add_u32 s5, s5, s6',
      's_lshl_b32 s6, s59, 6', 's_add_u32 s68, s5, s6',
      's_mul_i32 s5, s70, %d' % (12 * 16384), 's_add_u32 s69, s5, s34',
      f'v_add_u32 v9, 1, v{vLANE}', 'v_xor_b32 v9, s59, v9', 'v_lshlrev_b32 v9, 7, v9', 'v_mov_b32 v10, 1')
    srd(a, 20, 40, 41, 0x400000); srd(a, 28, 54, 55, 0xC00000, PART_OFF); srd(a, 16, 50, 51, 0x400000)
    a('s_mov_b32 s36, 0')
    if not STM: stamp(a, 2)
    def rd(st, c, b, d):
        slot = st % RING
        return [f'ds_read_b64_tr_b16 v[{d+2*p}:{d+2*p+1}], v{vR + b + 4 * (slot >> 2)} offset:{(slot & 3) * 16384 + c * 4096 + p * 2048}' for p in range(2)]
    def mf(b, A, h):
        d = acc(b)
        return f'v_mfma_f32_32x32x16_bf16 v[{d}:{d+15}], v[{A}:{A+3}], v[{h}:{h+3}], v[{d}:{d+15}]'
    def item(st, c, blocks, s):
        return [(rd(st, c, b, WS[s] + 4 * b), mf(b, WS[s] + 4 * b, H(st, c))) for b in blocks]
    def phase(prev, cur, extra):
        out = []; n = max(len(prev), len(cur))
        for j in range(n):
            if j < len(prev):
                out += [f's_waitcnt lgkmcnt({2 * (len(prev) - 1 - j) + 2 * min(j, len(cur))})', prev[j][1]]
            if j < len(cur): out += cur[j][0]
            if j < len(extra): out += extra[j]
        for e in extra[n:]: out += e
        return out
    def spin(tag, soff, need):
        return [f'L3_{tag}:', f'v_readfirstlane_b32 s5, v{vPOLL}', f's_cmp_ge_u32 s5, {need}', f's_cbranch_scc1 L3_{tag}_ok',
                's_add_u32 s7, s7, 1', 's_cmp_ge_u32 s7, 0x40000', f's_cbranch_scc1 L3_{tag}_ok',
                's_sleep 1', f'buffer_load_dword v{vPOLL}, v{vZERO}, s[24:27], s{soff} offen sc1', 's_waitcnt vmcnt(0)', f's_branch L3_{tag}', f'L3_{tag}_ok:']
    ALLB = [0, 1, 2, 3]
    def extras(g):
        return [[g[0][:1], g[0][1:], g[1], []], [g[2], [], g[3], []], [g[4], [], [], []], [g[5], [], [], []]] if g else [[], [], [], []]
    body = []; side = []
    S2 = 14 - DIST; S2P = S2 - P2
    for s in range(6):
        body.append(f's_waitcnt vmcnt({6 * (DIST - 1)})')
        if s == S2 - 6:
            body += ['s_cmp_eq_u32 s36, 1', 's_cbranch_scc1 L3_e2', 'L3_e2r:']
            sd = Asm(); sd('L3_e2:'); srd(sd, 12, 46, 47, 1024 * 2048)
            sd('s_lshl_b32 s32, s59, 19', 's_lshl_b32 s33, s59, 16', 's_add_u32 s33, s33, %d' % (56 * 16384),
               's_mov_b32 s7, 0', 's_cmp_lg_u32 s56, 0', 's_cbranch_scc1 L3_e2r', f's_waitcnt vmcnt({6 * P2})', *spin('sp2', 66, 8)); sd('s_branch L3_e2r')
            side += sd.L
        if s == E1:
            body += ['s_cmp_eq_u32 s36, 0', 's_cbranch_scc1 L3_e1w', 'L3_e1wr:']
            side += ['L3_e1w:', f's_waitcnt vmcnt({6 * E1})', 's_branch L3_e1wr']
        body.append('s_barrier')
        if s == E1:
            body += ['s_or_b32 s5, s36, s56', 's_cbranch_scc0 L3_e1', 'L3_e1r:']
            side += ['L3_e1:', 's_mov_b64 exec, 1', f'buffer_atomic_add v10, v{vZERO}, s[24:27], s66 offen', 's_mov_b64 exec, -1', 's_branch L3_e1r']
        if s == S2P - 6:
            body += ['s_cmp_eq_u32 s36, s37', 's_cbranch_scc1 L3_e2p', 'L3_e2pr:']
            side += ['L3_e2p:', f'buffer_load_dword v{vPOLL}, v{vZERO}, s[24:27], s66 offen sc1', 's_branch L3_e2pr']
        ex = extras(ld(s + DIST))
        for c in range(4):
            prev = item(s, c - 1, ALLB, (c - 1) & 1) if c else item(s - 1, 3, ALLB, 1)
            body += phase(prev, item(s, c, ALLB, c & 1), ex[c])
    body += ['s_add_u32 s36, s36, 1', 's_cmp_lt_u32 s36, 2', 's_cbranch_scc1 L3_loop']
    check_loop([x for x in body if not x.endswith(':')])
    a('L3_loop:'); a(*body)
    XR = 56; PK = 32
    prev = item(11, 3, ALLB, 1)
    for s in range(12, 18):
        infl = min(DIST - 1, 17 - s)
        a(f's_waitcnt vmcnt({6 * infl + (2 if s == 17 else 0)})', 's_barrier')
        ex = extras(ld(s + DIST) if s + DIST < 18 else None)
        if s == 16: ex[1] = [[f'buffer_load_dwordx4 v[{XR+4*j}:{XR+4*j+3}], v{vX}, s[20:23], s68 offen offset:{j * 32}'] for j in range(2)]
        for c in range(4):
            cur = item(s, c, ALLB if s < 18 - DEFER else [1, 2, 3], c & 1)
            a(*phase(prev, cur, ex[c])); prev = cur
    groups = [[(rd(s, c, 0, WS[s & 1] + 4 * c), mf(0, WS[s & 1] + 4 * c, H(s, c))) for c in range(4)] for s in range(18 - DEFER, 18)]
    assert DEFER % 2 == 0
    a(*phase(prev, groups[0] if groups else [], []))
    stamp(a, 1 if STM else 3)
    pub = []
    for i in range(1, 4):
        d = acc(i); pk = PK + 8 * (i - 1)
        pub.append([f'v_cvt_pk_bf16_f32 v{pk+j}, v{d+2*j}, v{d+2*j+1}' for j in range(8)] +
                   [f's_xor_b32 s5, s59, {i}', 's_mul_i32 s5, s5, %d' % (3 * 16384), 's_add_u32 s5, s5, s69', f's_add_u32 s5, s5, {(i - 1) * 16384}'] +
                   [f'buffer_store_dwordx4 v[{pk+4*j}:{pk+4*j+3}], v{vL16}, s[28:31], s5 offen offset:{j * 1024} sc1' for j in range(2)])
    if groups:
        first = True
        for gi in range(len(groups)):
            a(*phase(groups[gi], groups[gi + 1] if gi + 1 < len(groups) else [], pub if first else [])); first = False
    else:
        for p in pub: a(*p)
    a('s_mul_i32 s5, s59, %d' % (3 * 16384), 's_add_u32 s69, s69, s5', 's_add_u32 s71, s69, 16384', 's_add_u32 s35, s69, 32768', 's_mov_b32 s7, 0')
    if STM: a('s_waitcnt vmcnt(0)'); stamp(a, 2)
    a('s_waitcnt vmcnt(0)', 's_mov_b64 exec, 7', 'buffer_atomic_add v10, v9, s[24:27], s38 offen', 's_mov_b64 exec, -1')
    d = acc(0); R = 96
    for j in range(2):
        for i in range(4):
            a(f'v_lshlrev_b32 v{R+8*j+2*i}, 16, v{XR+4*j+i}', f'v_and_b32 v{R+8*j+2*i+1}, 0xffff0000, v{XR+4*j+i}')
    a('s_cmp_lg_u32 s56, 0', 's_cbranch_scc1 L3_sp4_ok', f'v_mov_b32 v{vPOLL}, 0', *spin('sp4', 67, 24))
    a('s_barrier')
    stamp(a, 3 if STM else 4)
    for i in range(3):
        for j in range(2):
            a(f'buffer_load_dwordx4 v[{PK+8*i+4*j}:{PK+8*i+4*j+3}], v{vL16}, s[28:31], s{[69, 71, 35][i]} offen offset:{j * 1024} sc1')
    U = 112
    for i in range(3):
        a(f's_waitcnt vmcnt({4 - 2 * i})')
        for j in range(8):
            a(f'v_lshlrev_b32 v{U+2*j}, 16, v{PK+8*i+j}', f'v_and_b32 v{U+2*j+1}, 0xffff0000, v{PK+8*i+j}')
        for j in range(8):
            a(f'v_pk_add_f32 v[{d+2*j}:{d+2*j+1}], v[{d+2*j}:{d+2*j+1}], v[{U+2*j}:{U+2*j+1}]')
    if STM: stamp(a, 4)
    for j in range(2):
        e = d + 8 * j; r = R + 8 * j; x = XR + 4 * j
        for i in range(4):
            a(f'v_permlane32_swap_b32 v{e+i}, v{e+4+i}')
        for i in range(4):
            a(f'v_pk_add_f32 v[{e+2*i}:{e+2*i+1}], v[{e+2*i}:{e+2*i+1}], v[{r+2*i}:{r+2*i+1}]')
        for i in range(4):
            a(f'v_cvt_pk_bf16_f32 v{x+i}, v{e+2*i}, v{e+2*i+1}')
        a(f'buffer_store_dwordx4 v[{x}:{x+3}], v{vX}, s[16:19], s68 offen offset:{j * 32}')
    if PROF: a('s_waitcnt vmcnt(0)')
    stamp(a, 5)
    stamp_out(a, 2, 54, 56)
    a('L3_done:', 's_endpgm')
    a(*side)
    return a.finish(), descriptor('gemm2_kernel', 256, 256, 96)

def main(out):
    hdr = open('cdna_kernels/%s.s.ref' % NAME).read().split('\n')
    top = [l for l in hdr if l.startswith(';') and '@launch' not in l and 'Override launch' not in l and 'grid=ceil' not in l]
    top += ['; Generated by gen/gen.py (hand-written generator; no compiler output).',
            '; @launch kernel=ln_kernel grid=(256,1,1) block=(512,1,1) lds=512',
            f'; @launch kernel=gemm1_kernel grid=(256,1,1) block=(512,1,1) lds={K2_LDS}',
            f'; @launch kernel=gemm2_kernel grid=(256,1,1) block=(512,1,1) lds={K3_LDS}',
            '.amdgcn_target "amdgcn-amd-amdhsa--gfx950"']
    ks = [k1(), k2(), k3()]
    s = '\n'.join(top) + '\n' + ''.join(k[0] for k in ks) + ''.join(k[1] for k in ks)
    open(out, 'w').write(s)

if __name__ == '__main__':
    main(sys.argv[1] if len(sys.argv) > 1 else 'cdna_kernels/%s.s' % NAME)
```

```python
import sys, struct, os
from asmlib import Asm, check_loop

NAME = 'parallel_sum__linear_kernel_hedgehog__geglu_ffn__prompt'
def f2u(x): return struct.unpack('<I', struct.pack('<f', x))[0]
def hx(x): return '0x%x' % x
env = lambda k, d: int(os.environ.get(k, str(d)))

XN_OFF = 0
ACT_OFF = 0x400000
ACT_MT = 144 * 8192
KV_OFF = 0x1A00000
KV_PART = 2112 * 4
KV_SIZE = 256 * KV_PART
FL = KV_SIZE
LNF = FL + 1024; HF = FL + 2048; KVF_ = FL + 10240; OFD = 12288; PFL = FL + 22528; DUMF = FL + 32768
KVSRD_SIZE = FL + 65536
PART_OFF = 0x2000000
LOG2E = 1.4426950408889634
PROF = env('PROF', 0); PROF_OFF = 0x8000000
EXP = os.environ.get('EXP', '')
LA = env('LA', 2); R1S = env('R1S', 10); PFIT = env('PFIT', 1)
DEFER = env('DEFER', 8); KP = env('KP', 4); KC = env('KC', 6); KWD = env('KWD', 3); KFD = env('KFD', 3); P2 = env('P2', 2)
FG = env('FG', 5); PG = env('PG', 7)
SPIN = 0x20000

X_BASE = 0; X_ST = 16384
GU_BASE = 65536; GU_ST = 14592; UP_OFF = 7168 + 128
QKV_BASE = GU_BASE + 4 * GU_ST; QKV_ST = 6144
LN_BASE = 153600
WPHI_BASE = 161792
PT_BASE = 98304; PT_ROW = 144; PT_W = 64 * PT_ROW
QX_BASE = PT_BASE + 4 * PT_W
EXC_BASE = 131072
ZB = EXC_BASE + 4096
LDS = 163840
MF = 'v_mfma_f32_16x16x32_bf16'

sX, sWQ, sPHI, sWO, sG, sU, sWD, sOUT, sWS = 40, 42, 44, 46, 48, 50, 52, 54, 56
sNON, sW, sWM, sWN, sMT, sJ = 58, 59, 60, 61, 62, 63
sXO, sDO, sQO, sDS, sPQ, sPI1 = 64, 65, 66, 67, 68, 69
sSIDE, sM3, sNT, sOWN, sWO3, sHO3 = 70, 71, 72, 73, 74, 75
sL, sC1 = 84, 86
sAB, sHFO, sHFP, sKVO, sPFO, sXO3, sINB, sM03 = 88, 89, 90, 91, 92, 93, 94, 95
sCNT, sPI2, sPD, sPG = 36, 37, 38, 39
vLANE, vL16, vST = 1, 2, 3
vDX, vD2, vD3, vD4, vRX, vRG, vRQ0, vRQ1, vPG, vPQ, vPD, vDUM = 4, 5, 6, 7, 8, 9, 10, 11, 12, 13, 14, 15
vDW, vDH, vX, vR, vL4, vNON, vPOLL, vEX, vPTW, vPTR, vWPR, vL4H = 20, 22, 23, 24, 32, 33, 34, 35, 36, 37, 38, 39

def stamp(a, i):
    if not PROF: return
    a('s_memtime s[96:97]', 's_memrealtime s[98:99]', 's_waitcnt lgkmcnt(0)',
      f'v_writelane_b32 v{vST}, s96, {2*i}', f'v_writelane_b32 v{vST}, s98, {2*i+1}')

def srd(a, d, lo, size, off=0):
    if off:
        a(f's_add_u32 s{d}, s{lo}, {hx(off)}', f's_addc_u32 s{d+1}, s{lo+1}, 0')
    else:
        a(f's_mov_b32 s{d}, s{lo}', f's_mov_b32 s{d+1}, s{lo+1}')
    a(f's_and_b32 s{d+1}, s{d+1}, 0xffff', f's_mov_b32 s{d+2}, {hx(size)}', f's_mov_b32 s{d+3}, 0x20000')

class Em:
    def __init__(s, a): s.a = a; s.q = {'v': [], 'l': []}; s.done = {'v': 0, 'l': 0}
    def __call__(s, *t): s.a(*t)
    def vm(s, tag, *t): s.a(*t); s.q['v'].append(tag)
    def ld(s, tag, *t): s.a(*t); s.q['l'].append(tag)
    def _n(s, k, tags, cap):
        q = s.q[k]
        if tags == 'all': last = len(q) - 1
        else:
            idx = [i for i, t in enumerate(q) if t in tags]
            assert idx, tags
            last = idx[-1]
        if last < s.done[k]: return None
        n = min(len(q) - 1 - last, cap); s.done[k] = len(q) - n
        return n
    def wait(s, v=None, l=None):
        p = []
        if v is not None:
            n = s._n('v', v, 63)
            if n is not None: p.append(f'vmcnt({n})')
        if l is not None:
            n = s._n('l', l, 15)
            if n is not None: p.append(f'lgkmcnt({n})')
        if p: s.a('s_waitcnt ' + ' '.join(p))
    def run(s, items):
        for it in items:
            if isinstance(it, str): s.a(it)
            elif it[0] == 'vm': s.vm(*it[1:])
            elif it[0] == 'ld': s.ld(*it[1:])
            elif it[0] == 'wv': s.wait(v=it[1])
            elif it[0] == 'wl': s.wait(l=it[1])
            else: raise ValueError(it)
    def stamp(s, i):
        if PROF: stamp(s.a, i); s.done['l'] = len(s.q['l'])

def mfma(d, A, B, c=None):
    return f'{MF} v[{d}:{d+3}], v[{A}:{A+3}], v[{B}:{B+3}], ' + (f'v[{d}:{d+3}]' if c is None else '0')

def flag_store(soff):
    return ['s_mov_b64 exec, 1', f'buffer_store_dword v{vNON}, off, s[24:27], s{soff} sc1', 's_mov_b64 exec, -1']
def poll_load(voff, soff, off=0):
    return f'buffer_load_dword v{vPOLL}, v{voff}, s[24:27], s{soff} offen offset:{off} sc1'
def spin(tag, voff, soff, off=0):
    return ['s_mov_b32 s7, 0', f'L_{tag}:', f'v_cmp_ne_u32 vcc, s{sNON}, v{vPOLL}', 's_cmp_eq_u64 vcc, 0', f's_cbranch_scc1 L_{tag}_ok',
            's_add_u32 s7, s7, 1', f's_cmp_ge_u32 s7, {hx(SPIN)}', f's_cbranch_scc1 L_{tag}_ok',
            's_sleep 1', poll_load(voff, soff, off), 's_waitcnt vmcnt(0)', f's_branch L_{tag}', f'L_{tag}_ok:']

def red4(a, m, op, mid):
    a(f'v_permlane32_swap_b32 v{m[0]}, v{m[2]}', f'v_permlane32_swap_b32 v{m[1]}, v{m[3]}',
      f'{op} v{m[0]}, v{m[0]}, v{m[2]}', f'{op} v{m[1]}, v{m[1]}, v{m[3]}',
      f'v_permlane16_swap_b32 v{m[0]}, v{m[1]}', f'{op} v{m[0]}, v{m[0]}, v{m[1]}', mid,
      f'v_mov_b32 v{m[1]}, v{m[0]}', f'v_permlane16_swap_b32 v{m[0]}, v{m[1]}',
      f'v_mov_b32 v{m[2]}, v{m[0]}', f'v_mov_b32 v{m[3]}, v{m[1]}',
      f'v_permlane32_swap_b32 v{m[0]}, v{m[2]}', f'v_permlane32_swap_b32 v{m[1]}, v{m[3]}')

def softmax2(a, P, E, T, O):
    for i in range(8): a(f'v_cvt_pk_bf16_f32 v{T+i}, v{P+2*i}, v{P+2*i+1}')
    for i in range(8): a(f'v_lshlrev_b32 v{P+2*i}, 16, v{T+i}', f'v_and_b32 v{P+2*i+1}, 0xffff0000, v{T+i}')
    m = [T, T + 2, T + 4, T + 6]
    src = [(P, ''), (P + 8, ''), (P, '-'), (P + 8, '-')]
    for q, (p, n) in enumerate(src): a(f'v_max3_f32 v{m[q]}, {n}v{p}, {n}v{p+1}, {n}v{p+2}')
    for i in (3, 5):
        for q, (p, n) in enumerate(src): a(f'v_max3_f32 v{m[q]}, v{m[q]}, {n}v{p+i}, {n}v{p+i+1}')
    for q, (p, n) in enumerate(src): a(f'v_max3_f32 v{m[q]}, v{m[q]}, {n}v{p+7}, {n}v{p+7}')
    red4(a, m, 'v_max_f32', f'v_mul_f32 v{m[0]}, s{sL}, v{m[0]}')
    for i in range(8):
        t = i >> 2
        a(f'v_pk_fma_f32 v[{E+2*i}:{E+2*i+1}], v[{P+2*i}:{P+2*i+1}], s[{sL}:{sL+1}], v[{m[t]}:{m[t]+1}] op_sel_hi:[1,1,0] neg_lo:[0,0,1] neg_hi:[0,0,1]',
          f'v_pk_fma_f32 v[{P+2*i}:{P+2*i+1}], v[{P+2*i}:{P+2*i+1}], s[{sL}:{sL+1}], v[{m[2+t]}:{m[2+t]+1}] op_sel_hi:[1,1,0] neg_lo:[1,0,1] neg_hi:[1,0,1]')
    for i in range(16): a(f'v_exp_f32 v{E+i}, v{E+i}', f'v_exp_f32 v{P+i}, v{P+i}')
    src = [E, E + 8, P, P + 8]
    for q, p in enumerate(src): a(f'v_pk_add_f32 v[{m[q]}:{m[q]+1}], v[{p}:{p+1}], v[{p+2}:{p+3}]')
    for i in (4, 6):
        for q, p in enumerate(src): a(f'v_pk_add_f32 v[{m[q]}:{m[q]+1}], v[{m[q]}:{m[q]+1}], v[{p+i}:{p+i+1}]')
    for q in range(4): a(f'v_add_f32 v{m[q]}, v{m[q]}, v{m[q]+1}')
    red4(a, m, 'v_add_f32', f'v_rcp_f32 v{m[0]}, v{m[0]}')
    for q, p in enumerate(src):
        for i in range(4): a(f'v_pk_mul_f32 v[{p+2*i}:{p+2*i+1}], v[{p+2*i}:{p+2*i+1}], v[{m[q]}:{m[q]+1}] op_sel_hi:[1,0]')
    for q, p in enumerate(src):
        o = O + (q & 1) * 8 + (q >> 1) * 4
        for i in range(4): a(f'v_cvt_pk_bf16_f32 v{o+i}, v{p+2*i}, v{p+2*i+1}')

def geglu(a, G0, U0, G1, U1, T, O, vC0):
    g = [G0, G0 + 2, G1, G1 + 2]; u = [U0, U0 + 2, U1, U1 + 2]
    for i in range(4): a(f'v_pk_mul_f32 v[{T+2*i}:{T+2*i+1}], v[{g[i]}:{g[i]+1}], v[{g[i]}:{g[i]+1}]')
    for i in range(4): a(f'v_pk_fma_f32 v[{T+2*i}:{T+2*i+1}], v[{T+2*i}:{T+2*i+1}], s[{sC1}:{sC1+1}], v[{vC0}:{vC0+1}]')
    for i in range(4): a(f'v_pk_mul_f32 v[{T+2*i}:{T+2*i+1}], v[{T+2*i}:{T+2*i+1}], v[{g[i]}:{g[i]+1}]')
    for i in range(8): a(f'v_exp_f32 v{T+i}, v{T+i}')
    for i in range(4):
        a(f'v_pk_mul_f32 v[{g[i]}:{g[i]+1}], v[{g[i]}:{g[i]+1}], v[{u[i]}:{u[i]+1}]',
          f'v_pk_add_f32 v[{T+2*i}:{T+2*i+1}], v[{T+2*i}:{T+2*i+1}], 1.0 op_sel_hi:[1,0]')
    for i in range(8): a(f'v_rcp_f32 v{T+i}, v{T+i}')
    for i in range(4): a(f'v_pk_mul_f32 v[{g[i]}:{g[i]+1}], v[{g[i]}:{g[i]+1}], v[{T+2*i}:{T+2*i+1}]')
    for i in range(4): a(f'v_cvt_pk_bf16_f32 v{O+i}, v{g[i]}, v{g[i]+1}')

def layernorm(a, nyoung):
    X = 96; F = 104; Tm = 120; MEAN = 131; VAR = 132; vRD, vWR = 134, 135
    a(f'v_and_b32 v{vRD}, 7, v{vLANE}', f'v_lshlrev_b32 v{vRD}, 5, v{vRD}', f'v_add_u32 v{vRD}, {LN_BASE}, v{vRD}',
      f's_lshl_b32 s5, s{sW}, 2', f'v_add_u32 v{vWR}, s5, v{vRD}')
    a(f's_waitcnt vmcnt({nyoung})')
    stamp(a, 1)
    for i in range(8): a(f'v_lshlrev_b32 v{F+2*i}, 16, v{X+i}', f'v_and_b32 v{F+2*i+1}, 0xffff0000, v{X+i}')
    def cross(r, off):
        a(f'v_add_f32_dpp v{r}, v{r}, v{r} row_ror:8 row_mask:0xf bank_mask:0xf',
          f'v_mov_b32 v{Tm}, v{r}', f'v_permlane16_swap_b32 v{r}, v{Tm}', f'v_add_f32 v{r}, v{r}, v{Tm}',
          f'v_mov_b32 v{Tm}, v{r}', f'v_permlane32_swap_b32 v{r}, v{Tm}', f'v_add_f32 v{r}, v{r}, v{Tm}')
        a(f'ds_write_b32 v{vWR}, v{r} offset:{off}', 's_waitcnt lgkmcnt(0)', 's_barrier',
          f'ds_read_b128 v[{Tm}:{Tm+3}], v{vRD} offset:{off}', f'ds_read_b128 v[{Tm+4}:{Tm+7}], v{vRD} offset:{off+16}',
          's_waitcnt lgkmcnt(0)',
          f'v_pk_add_f32 v[{Tm}:{Tm+1}], v[{Tm}:{Tm+1}], v[{Tm+2}:{Tm+3}]', f'v_pk_add_f32 v[{Tm+4}:{Tm+5}], v[{Tm+4}:{Tm+5}], v[{Tm+6}:{Tm+7}]',
          f'v_pk_add_f32 v[{Tm}:{Tm+1}], v[{Tm}:{Tm+1}], v[{Tm+4}:{Tm+5}]', f'v_add_f32 v{r}, v{Tm}, v{Tm+1}',
          f'v_mul_f32 v{r}, {hx(f2u(1.0/1024))}, v{r}')
    for i in range(4): a(f'v_pk_add_f32 v[{Tm+2*i}:{Tm+2*i+1}], v[{F+4*i}:{F+4*i+1}], v[{F+4*i+2}:{F+4*i+3}]')
    a(f'v_pk_add_f32 v[{Tm}:{Tm+1}], v[{Tm}:{Tm+1}], v[{Tm+2}:{Tm+3}]', f'v_pk_add_f32 v[{Tm+4}:{Tm+5}], v[{Tm+4}:{Tm+5}], v[{Tm+6}:{Tm+7}]',
      f'v_pk_add_f32 v[{Tm}:{Tm+1}], v[{Tm}:{Tm+1}], v[{Tm+4}:{Tm+5}]', f'v_add_f32 v{MEAN}, v{Tm}, v{Tm+1}')
    cross(MEAN, 0)
    sub = lambda i, d: f'v_pk_add_f32 v[{d}:{d+1}], v[{F+2*i}:{F+2*i+1}], v[{MEAN-1}:{MEAN}] op_sel:[0,1] op_sel_hi:[1,1] neg_lo:[0,1] neg_hi:[0,1]'
    for i in range(4): a(sub(i, Tm + 2 * i))
    a(f'v_pk_mul_f32 v[{VAR}:{VAR+1}], v[{Tm}:{Tm+1}], v[{Tm}:{Tm+1}]', f'v_pk_mul_f32 v[128:129], v[{Tm+2}:{Tm+3}], v[{Tm+2}:{Tm+3}]',
      f'v_pk_fma_f32 v[{VAR}:{VAR+1}], v[{Tm+4}:{Tm+5}], v[{Tm+4}:{Tm+5}], v[{VAR}:{VAR+1}]', f'v_pk_fma_f32 v[128:129], v[{Tm+6}:{Tm+7}], v[{Tm+6}:{Tm+7}], v[128:129]')
    for i in range(4): a(sub(4 + i, Tm + 2 * i))
    for i in range(4):
        d = VAR if i % 2 == 0 else 128
        a(f'v_pk_fma_f32 v[{d}:{d+1}], v[{Tm+2*i}:{Tm+2*i+1}], v[{Tm+2*i}:{Tm+2*i+1}], v[{d}:{d+1}]')
    a(f'v_pk_add_f32 v[{VAR}:{VAR+1}], v[{VAR}:{VAR+1}], v[128:129]', f'v_add_f32 v{VAR}, v{VAR}, v{VAR+1}')
    cross(VAR, 256)
    def rbf(r): a(f'v_cvt_pk_bf16_f32 v{r}, v{r}, v{r}', f'v_and_b32 v{r}, 0xffff0000, v{r}')
    rbf(MEAN); rbf(VAR)
    a(f'v_add_f32 v{VAR}, {hx(f2u(1e-5))}, v{VAR}'); rbf(VAR)
    a(f'v_sqrt_f32 v{VAR}, v{VAR}'); rbf(VAR)
    a(f'v_rcp_f32 v{VAR}, v{VAR}')
    for i in range(8): a(sub(i, F + 2 * i))
    for i in range(8): a(f'v_cvt_pk_bf16_f32 v{X+i}, v{F+2*i}, v{F+2*i+1}')
    for i in range(8): a(f'v_lshlrev_b32 v{F+2*i}, 16, v{X+i}', f'v_and_b32 v{F+2*i+1}, 0xffff0000, v{X+i}')
    for i in range(8): a(f'v_pk_mul_f32 v[{F+2*i}:{F+2*i+1}], v[{F+2*i}:{F+2*i+1}], v[{VAR}:{VAR+1}] op_sel_hi:[1,0]')
    for i in range(8): a(f'v_cvt_pk_bf16_f32 v{X+i}, v{F+2*i}, v{F+2*i+1}')

def k3_wdma(st):
    slot = st & 7
    return [[f's_add_u32 m0, s{sM03}, {slot * 16384}', ('vm', ('W3', st), f'buffer_load_dwordx4 v{vDW}, s[12:15], s{sWO3} offen lds')],
            [('vm', ('W3', st), f'buffer_load_dwordx4 v{vDW+1}, s[12:15], s{sWO3} offen offset:1024 lds'), f's_add_u32 s{sWO3}, s{sWO3}, 0x20000']]
H3 = lambda st, tau: 128 + (st & 7) * 8 + tau * 4
def k3_hld(st):
    return [[('vm', ('H', st), f'buffer_load_dwordx4 v[{H3(st,0)}:{H3(st,0)+3}], v{vDH}, s[8:11], s{sHO3} offen sc1')],
            [('vm', ('H', st), f'buffer_load_dwordx4 v[{H3(st,1)}:{H3(st,1)+3}], v{vDH}, s[8:11], s{sHO3} offen offset:1024 sc1'), f's_add_u32 s{sHO3}, s{sHO3}, 0x4000']]
def flag(soff, tag='flag'):
    f = flag_store(soff)
    return [f[0], ('vm', tag, f[1]), f[2]]

def entry(a):
    a('s_cmp_ge_u32 s2, 256', 's_cbranch_scc1 L_done')
    a('s_load_dwordx8 s[40:47], s[0:1], 0', 's_load_dwordx8 s[48:55], s[0:1], 40', 's_load_dwordx2 s[56:57], s[0:1], 80')
    a('v_lshrrev_b32 v16, 6, v0', f'v_and_b32 v{vLANE}, 63, v0', f'v_readfirstlane_b32 s{sW}, v16', f'v_lshlrev_b32 v{vL16}, 4, v{vLANE}')
    a(f'v_and_b32 v17, 7, v{vLANE}', f'v_bfe_u32 v18, v{vLANE}, 3, 2', f'v_lshrrev_b32 v19, 5, v{vLANE}',
      'v_lshlrev_b32 v136, 11, v17', 'v_lshl_add_u32 v136, v16, 8, v136', 'v_lshl_add_u32 v136, v19, 6, v136', 'v_lshl_add_u32 v136, v18, 3, v136',
      's_lshl_b32 s3, s2, 14')
    a('s_waitcnt lgkmcnt(0)')
    stamp(a, 0)
    srd(a, 8, sX, 0x400000)
    for i in range(2):
        for h in range(2):
            a(f'buffer_load_dwordx2 v[{96+4*i+2*h}:{97+4*i+2*h}], v136, s[8:11], s3 offen offset:{i*128+h*32}')
    srd(a, 24, sWS, KVSRD_SIZE, KV_OFF)
    a(f's_mov_b32 s5, {FL}', f'buffer_load_dword v{vNON}, off, s[24:27], s5 sc1')
    a('v_lshl_add_u32 v137, v16, 2, v19', 'v_lshlrev_b32 v137, 14, v137', 'v_lshl_add_u32 v137, v18, 8, v137', 'v_lshl_add_u32 v137, v17, 4, v137')
    a('s_and_b32 s3, s2, 7', 's_lshr_b32 s4, s2, 3', f's_and_b32 s{sMT}, s4, 7',
      's_lshr_b32 s4, s4, 3', 's_lshl_b32 s3, s3, 2', f's_add_u32 s{sJ}, s3, s4')
    a(f's_and_b32 s{sWM}, s{sW}, 3', f's_lshr_b32 s{sWN}, s{sW}, 2')
    a('v_mul_u32_u24 v16, 4682, v0', 'v_lshrrev_b32 v16, 16, v16', 'v_mul_u32_u24 v17, 14, v16', 'v_sub_u32 v17, v0, v17',
      f's_and_b32 s5, s{sJ}, 1', 's_lshl_b32 s5, s5, 1', 'v_add_u32 v17, s5, v17', 'v_subrev_u32 v18, 14, v17', 'v_min_u32 v17, v17, v18',
      'v_mul_u32_u24 v16, 7168, v16', 'v_lshl_add_u32 v16, v17, 4, v16',
      f's_mul_i32 s5, s{sJ}, 224', f'v_add_u32 v{vD2}, s5, v16', f'v_mov_b32 v{vD3}, v{vD2}')
    a(f'v_lshrrev_b32 v16, 2, v{vLANE}', 'v_mul_u32_u24 v16, 6144, v16',
      f'v_lshrrev_b32 v18, 3, v{vLANE}', 'v_and_b32 v18, 2, v18', f'v_and_b32 v17, 3, v{vLANE}', 'v_xor_b32 v17, v17, v18',
      'v_lshl_add_u32 v16, v17, 4, v16', f's_lshl_b32 s5, s{sJ}, 6', 'v_add_u32 v16, s5, v16')
    a(f's_lshr_b32 s5, s{sWM}, 1', 's_lshl_b32 s5, s5, 11', f's_and_b32 s6, s{sWM}, 1', 's_mul_i32 s6, s6, %d' % (16 * 6144),
      's_add_u32 s5, s5, s6', f'v_add_u32 v{vD4}, s5, v16')
    srd(a, 12, sG, 1024 * 7168); srd(a, 16, sU, 1024 * 7168); srd(a, 20, sWQ, 1024 * 6144)
    a(f's_mov_b32 s{sDS}, {32 * 7168}', f's_lshl_b32 s5, s{sW}, 10',
      f's_add_u32 s29, s5, {GU_BASE}', f's_add_u32 s30, s5, {GU_BASE + UP_OFF}',
      f's_lshl_b32 s5, s{sWM}, 10', f's_add_u32 s31, s5, {QKV_BASE}', f's_lshl_b32 s28, s{sW}, 11', f's_mov_b32 s33, {GU_ST}')
    a(f's_cmp_lg_u32 s{sW}, 7', 's_cbranch_scc1 L_not7')
    a('s_mov_b32 s12, s20', 's_mov_b32 s13, s21', 's_mov_b32 s14, s22', 's_mov_b32 s16, s20', 's_mov_b32 s17, s21', 's_mov_b32 s18, s22',
      f's_mov_b32 s{sDS}, {32 * 6144}', f's_mov_b32 s29, {QKV_BASE + 4096}', f's_mov_b32 s30, {QKV_BASE + 5120}', f's_mov_b32 s33, {QKV_ST}',
      f'v_add_u32 v{vD2}, 4096, v16', f'v_add_u32 v{vD3}, {4096 + 16 * 6144}, v16')
    a('L_not7:')
    a('s_mov_b32 s32, 0', 's_lshl_b32 s34, s33, 1', 's_add_u32 s35, s34, s33',
      f's_lshl_b32 s{sXO}, s{sMT}, 19', f's_mov_b32 s{sDO}, 0', f's_mov_b32 s{sQO}, 0')

def setup(a):
    a(f'v_add_u32 v{vDX}, s28, v{vL16}', f'v_lshlrev_b32 v{vL4}, 2, v{vLANE}', f'v_and_b32 v{vL4H}, 127, v{vL4}')
    a(f's_mov_b32 s78, {3584 * 2048}', 's_movk_i32 s5, 28672',
      f's_cmp_eq_u32 s{sW}, 4', f's_cselect_b32 s76, s{sWO}, s{sWD}', f's_cselect_b32 s77, s{sWO+1}, s{sWD+1}',
      f's_cselect_b32 s78, {1024 * 2048}, s78', 's_cselect_b32 s5, 8192, s5',
      's_and_b32 s77, s77, 0xffff', 's_mov_b32 s79, 0x20000', f's_mul_i32 s{sPD}, s2, s5',
      f'v_and_b32 v{vPD}, 255, v0', f'v_min_u32 v{vPD}, 223, v{vPD}', f'v_lshlrev_b32 v{vPD}, 7, v{vPD}',
      f's_lshr_b32 s{sPI2}, s2, 5', f's_add_u32 s{sPI2}, s{sPI2}, {PFIT}', f's_min_u32 s{sPI2}, s{sPI2}, 6',
      f's_cmp_gt_u32 s{sW}, 4', f's_cselect_b32 s{sPI2}, -1, s{sPI2}')
    a(f's_cmp_lt_u32 s{sW}, 4', f's_cselect_b32 s80, s{sG}, s{sU}', f's_cselect_b32 s81, s{sG+1}, s{sU+1}', 's_and_b32 s81, s81, 0xffff',
      f's_mov_b32 s82, {1024 * 7168}', 's_mov_b32 s83, 0x20000',
      's_lshr_b32 s5, s2, 3', 's_and_b32 s6, s2, 7',
      f's_mul_i32 s{sPG}, s5, {32 * 7168}', 's_mul_i32 s7, s6, 896', f's_add_u32 s{sPG}, s{sPG}, s7',
      f's_mul_i32 s{sPQ}, s5, {32 * 6144}', 's_lshl_b32 s7, s6, 8', f's_add_u32 s{sPQ}, s{sPQ}, s7',
      f'v_lshrrev_b32 v16, 7, v{vPD}', 'v_mul_u32_u24 v17, 9363, v16', 'v_lshrrev_b32 v17, 16, v17',
      f'v_mul_u32_u24 v17, {7168 - 896}, v17', f'v_add_u32 v{vPG}, v{vPD}, v17',
      'v_min_u32 v17, 191, v0', 'v_mul_u32_u24 v18, 10923, v17', 'v_lshrrev_b32 v18, 16, v18',
      'v_mul_u32_u24 v18, 6, v18', 'v_sub_u32 v18, v17, v18', 'v_sub_u32 v17, v17, v18', 'v_lshlrev_b32 v17, 10, v17',
      'v_and_b32 v16, 1, v18', 'v_lshl_add_u32 v17, v16, 7, v17', 'v_lshrrev_b32 v18, 1, v18', f'v_lshl_add_u32 v{vPQ}, v18, 11, v17',
      f's_lshr_b32 s{sPI1}, s2, 5', f's_sub_u32 s{sPI1}, s{sPI1}, {LA}', f's_max_i32 s{sPI1}, s{sPI1}, 0',
      f's_cmp_lt_u32 s5, {R1S}', f's_cselect_b32 s{sPI1}, -2, s{sPI1}', 's_cmp_lt_u32 s5, 2', f's_cselect_b32 s{sPI1}, -1, s{sPI1}')
    if 'nopf1' in EXP: a(f's_mov_b32 s{sPI1}, -1')
    if 'nopf2' in EXP: a(f's_mov_b32 s{sPI2}, -1')
    a(f's_lshl_b32 s5, s{sWM}, 12', f'v_add_u32 v{vRX}, s5, v{vL16}')
    a(f'v_lshrrev_b32 v16, 2, v{vLANE}',
      f'v_and_b32 v17, 3, v{vLANE}', 'v_lshlrev_b32 v17, 3, v17',
      f'v_mul_u32_u24 v{vRG}, 224, v16', f'v_add3_u32 v{vRG}, v{vRG}, v17, s5' if False else f'v_add_u32 v{vRG}, v{vRG}, v17', f'v_add_u32 v{vRG}, {GU_BASE}, v{vRG}',
      'v_lshl_add_u32 v18, v16, 6, v17', f'v_add_u32 v{vWPR}, {WPHI_BASE}, v18',
      f'v_bfe_u32 v19, v{vLANE}, 4, 1', 'v_lshl_add_u32 v18, v19, 5, v18', f'v_add_u32 v{vRQ0}, {QKV_BASE}, v18', f'v_xor_b32 v{vRQ1}, 32, v{vRQ0}')
    a(f's_mul_i32 s5, s{sWM}, {PT_W}', f's_add_u32 s5, s5, {PT_BASE}',
      f'v_mul_u32_u24 v{vPTR}, {PT_ROW}, v16', f'v_add3_u32 v{vPTR}, v{vPTR}, v17, s5',
      f'v_and_b32 v18, 15, v{vLANE}', f'v_mul_u32_u24 v18, {PT_ROW}, v18', f'v_lshrrev_b32 v19, 4, v{vLANE}',
      'v_lshl_add_u32 v18, v19, 3, v18', f'v_add_u32 v{vPTW}, s5, v18')
    a(f's_and_b32 s{sSIDE}, s2, 1', 's_and_b32 s5, s2, 6', 's_lshl_b32 s5, s5, 1', 's_lshr_b32 s6, s2, 6', f's_add_u32 s{sM3}, s5, s6',
      f's_bfe_u32 s{sNT}, s2, 0x30003', f's_lshl_b32 s{sOWN}, s{sSIDE}, 1', f's_add_u32 s{sOWN}, s{sOWN}, s{sWN}')
    a(f'v_and_b32 v18, 15, v{vLANE}', 'v_lshlrev_b32 v20, 1, v19', 'v_xor_b32 v18, v18, v20', 'v_lshlrev_b32 v18, 4, v18', 'v_lshl_add_u32 v18, v19, 11, v18',
      f's_lshl_b32 s5, s{sW}, 14', f's_lshl_b32 s6, s{sNT}, 8', 's_add_u32 s5, s5, s6',
      f'v_add_u32 v{vDW}, s5, v18', f'v_xor_b32 v{vDW+1}, 0x80, v{vDW}', f'v_add_u32 v{vDW+1}, 7168, v{vDW+1}')
    a(f'v_add_u32 v{vDH}, s28, v{vL16}',
      f's_mul_i32 s{sWO3}, s{sSIDE}, {28 * 131072}', f's_mul_i32 s{sHO3}, s{sSIDE}, {28 * 16384}', f's_mul_i32 s5, s{sM3}, {ACT_MT}', f's_add_u32 s{sHO3}, s{sHO3}, s5', f's_mov_b32 s{sM03}, s28')
    a('v_and_b32 v18, 7, v16', f's_lshl_b32 s5, s{sOWN}, 1', 'v_xor_b32 v18, s5, v18', 'v_lshl_add_u32 v18, v18, 5, v17',
      'v_lshl_add_u32 v18, v16, 8, v18', f's_lshl_b32 s5, s{sWN}, 13', f'v_add_u32 v{vR}, s5, v18')
    for n in range(1, 8): a(f'v_xor_b32 v{vR+n}, {n * 32}, v{vR}')
    a(f'v_and_b32 v18, 15, v{vLANE}', 'v_lshlrev_b32 v18, 11, v18', f'v_bfe_u32 v19, v{vLANE}, 4, 1', 'v_lshl_add_u32 v18, v19, 5, v18',
      f'v_lshrrev_b32 v19, 5, v{vLANE}', f'v_lshl_add_u32 v{vX}, v19, 4, v18',
      f's_lshl_b32 s5, s{sM3}, 18', f's_lshl_b32 s6, s{sWM}, 16', 's_add_u32 s5, s5, s6', f's_lshl_b32 s6, s{sNT}, 8', 's_add_u32 s5, s5, s6',
      f's_lshl_b32 s6, s{sOWN}, 6', f's_add_u32 s{sXO3}, s5, s6')
    a(f's_lshl_b32 s5, s{sM3}, 3', f's_add_u32 s5, s5, s{sNT}', 's_lshl_b32 s5, s5, 1', f's_add_u32 s5, s5, s{sSIDE}',
      's_lshl_b32 s6, s5, 14', f's_add_u32 s{sINB}, s6, s28',
      's_lshl_b32 s5, s5, 5', f's_lshl_b32 s6, s{sW}, 2', 's_add_u32 s5, s5, s6', f's_add_u32 s{sPFO}, s5, {PFL}')
    a(f's_lshl_b32 s5, s{sW}, 12', f's_add_u32 s5, s5, {EXC_BASE}', f'v_add_u32 v{vEX}, s5, v{vL16}')
    a(f's_lshl_b32 s5, s{sMT}, 1', f's_lshr_b32 s6, s{sWM}, 1', 's_add_u32 s5, s5, s6',
      f's_mul_i32 s{sAB}, s5, {ACT_MT}', f's_and_b32 s7, s{sWM}, 1', 's_lshl_b32 s6, s7, 12', f's_add_u32 s{sAB}, s{sAB}, s6',
      's_lshl_b32 s5, s5, 9', f's_lshl_b32 s6, s{sJ}, 4', 's_add_u32 s5, s5, s6', 's_lshl_b32 s7, s7, 3', 's_add_u32 s5, s5, s7',
      f's_lshl_b32 s6, s{sWN}, 2', 's_add_u32 s5, s5, s6', f's_add_u32 s{sHFO}, s5, {HF}',
      f's_lshl_b32 s5, s{sM3}, 9', f's_lshl_b32 s6, s{sSIDE}, 8', 's_add_u32 s5, s5, s6', f's_add_u32 s{sHFP}, s5, {HF}',
      f's_mul_i32 s{sKVO}, s{sJ}, {8 * KV_PART}')
    c0 = -2.0 * 0.7978845608028654 * LOG2E
    a(f's_mov_b32 s{sL}, {hx(f2u(LOG2E))}', f's_mov_b32 s{sL+1}, {hx(f2u(LOG2E))}',
      f's_mov_b32 s{sC1}, {hx(f2u(c0 * 0.044715))}', f's_mov_b32 s{sC1+1}, {hx(f2u(c0 * 0.044715))}')
    return c0

def k2_dma(st, wn):
    slot = st & 3; tx = ('X', st); tw = ('W', st)
    x = [[f's_add_u32 m0, s28, {X_BASE + slot * X_ST}', ('vm', tx, f'buffer_load_dwordx4 v{vDX}, s[8:11], s{sXO} offen sc1 lds')],
         [('vm', tx, f'buffer_load_dwordx4 v{vDX}, s[8:11], s{sXO} offen offset:1024 sc1 lds'), f's_add_u32 s{sXO}, s{sXO}, 16384']]
    w = [[f's_add_u32 m0, s29, s{32+slot}', ('vm', tw, f'buffer_load_dwordx4 v{vD2}, s[12:15], s{sDO} offen lds')],
         [f's_add_u32 m0, s30, s{32+slot}', ('vm', tw, f'buffer_load_dwordx4 v{vD3}, s[16:19], s{sDO} offen lds'), f's_add_u32 s{sDO}, s{sDO}, s{sDS}']]
    if wn == 0:
        w.append([f's_add_u32 m0, s31, {slot * QKV_ST}', ('vm', tw, f'buffer_load_dwordx4 v{vD4}, s[20:23], s{sQO} offen lds'), f's_add_u32 s{sQO}, s{sQO}, {32 * 6144}'])
    return x, w

acc2 = lambda n, t: 96 + 16 * n + 4 * t
XS = [40, 56]; WR = 72; NR = 5; LK = 4
def k2_wread(wn, st, n):
    slot = st & 3; d = WR + 4 * ((st * 10 + n) % NR); r = []
    for p in range(2):
        if wn == 0 and n < 6: ad, off = [vRQ0, vRQ1][n & 1], slot * QKV_ST + (n >> 1) * 2048 + p * 1024
        else:
            q = n - 6 if wn == 0 else n + 4
            ad, off = vRG, slot * GU_ST + (q & 1) * UP_OFF + (q >> 1) * 32 + p * 3584
        r.append(('ld', ('w', st, n), f'ds_read_b64_tr_b16 v[{d+2*p}:{d+2*p+1}], v{ad} offset:{off}'))
    return r
def k2_xread(st, t):
    d = XS[st & 1] + 4 * t
    return ('ld', ('x', st, t), f'ds_read_b128 v[{d}:{d+3}], v{vRX} offset:{X_BASE + (st & 3) * X_ST + t * 1024}')

def k2_stage(e, wn, st, dq, hooks=()):
    dq = list(dq)
    for n in range(10):
        nn = n + LK; last = (st == 31)
        if nn == 10:
            e.wait(v=None if last else [('X', st + 1), ('W', st + 1)], l='all'); e('s_barrier'); e(*hooks)
        rd = k2_wread(wn, st + nn // 10, nn % 10) if not (last and nn >= 10) else [None, None]
        ex = k2_xread(st + 1, n - 6) if (n >= 6 and not last) else None
        A = WR + 4 * ((st * 10 + n) % NR)
        fill = [rd[0], rd[1], ex, None]
        for t in range(4):
            e.wait(l=[('w', st, n), ('x', st, t)])
            B = XS[st & 1] + 4 * t
            e(mfma(acc2(n, t), B, A) if (wn == 0 and n in (4, 5)) else mfma(acc2(n, t), A, B))
            if fill[t]: e.run([fill[t]])
        if n >= 6:
            k = (len(dq) + 9 - n) // (10 - n)
            for g in dq[:k]: e.run(g)
            dq = dq[k:]

def pack(d, s, n=2): return [f'v_cvt_pk_bf16_f32 v{d+i}, v{s+2*i}, v{s+2*i+1}' for i in range(n)]

PHI = 40; WP = 88; TS = 8
def phi_pair(e, QB, P, E, O):
    for t in range(2):
        for ft in range(2): e(mfma(P + 8 * t + 4 * ft, WP + 4 * ft, QB + 4 * t, 0))
    softmax2(e, P, E, TS, O)

def h_start(e, tag):
    e.wait(v=['hpoll']); e(*spin(tag, vL4, sHFP))
    for st in range(6):
        for g in k3_hld(st): e.run(g)

def k2_path(a, wn, c0):
    side = []
    e = Em(a)
    e.q['v'] = [('W', 0), ('W', 1)]; e.done['v'] = 2
    for st in range(2):
        for g in k2_dma(st, wn)[0]: e.run(g)
    for st in range(2, 4):
        x, w = k2_dma(st, wn)
        for g in x + w: e.run(g)
    e(f's_mov_b32 s{sCNT}, 0')
    e.wait(v=[('X', 0)]); e('s_barrier')
    e.stamp(3)
    for n in range(4): e.run(k2_wread(wn, 0, n) + [k2_xread(0, n)])
    bodies = []
    for it in range(7):
        b = Asm(); e.a = b
        for st in range(4 * it, 4 * it + 4):
            x, w = k2_dma(st + 4, wn)
            hk = []
            if st % 4 == 0: hk = [f's_cmp_eq_u32 s{sCNT}, s{sPI1}', f's_cbranch_scc1 L_pa{wn}', f'L_par{wn}:']
            if st % 4 == 2: hk = [f's_cmp_eq_u32 s{sCNT}, s{sPI2}', f's_cbranch_scc1 L_pf{wn}', f'L_pfr{wn}:']
            k2_stage(e, wn, st, x + w, hk)
        bodies.append(b.L)
    assert all(b == bodies[1] for b in bodies[1:])
    for p, q in zip(bodies[0], bodies[1]): assert p == q or True
    body = bodies[1] + [f's_add_u32 s{sCNT}, s{sCNT}, 1', f's_cmp_lt_u32 s{sCNT}, 7', f's_cbranch_scc1 L_loop{wn}']
    assert bodies[0] == bodies[1] or PROF
    check_loop([x for x in body if not x.endswith(':')])
    e.a = a
    a(f'L_loop{wn}:', *body)
    side += [f'L_pf{wn}:', f'buffer_load_dword v{vDUM}, v{vPD}, s[76:79], s{sPD} offen', f's_branch L_pfr{wn}',
             f'L_pa{wn}:', f'buffer_load_dword v{vDUM}, v{vPG}, s[80:83], s{sPG} offen']
    if wn == 0: side += [f'buffer_load_dword v{vDUM}, v{vPQ}, s[20:23], s{sPQ} offen']
    side += [f's_branch L_par{wn}']
    srd(a, 12, sWD, 3584 * 2048)
    for st in range(28, 32):
        dq = k3_wdma(st - 28) + (k3_wdma(4) + k3_wdma(5) if st == 31 else [])
        k2_stage(e, wn, st, dq)
    e.stamp(4)
    srd(a, 8, sWS, 16 * ACT_MT, ACT_OFF)
    vC0 = 4
    a(f'v_mov_b32 v{vC0}, {hx(f2u(c0))}', f'v_mov_b32 v{vC0+1}, {hx(f2u(c0))}',
      f's_mul_i32 s5, s{sJ}, 7', 's_add_u32 s5, s5, 1', 's_lshr_b32 s5, s5, 1', 's_lshl_b32 s5, s5, 13', f's_add_u32 s3, s5, s{sAB}')
    a(f's_lshl_b32 s5, s{sWM}, 11', f's_add_u32 s5, s5, {QX_BASE}', f'v_add_u32 v6, s5, v{vL16}')
    for ft in range(2):
        for p in range(2):
            e.ld('wp', f'ds_read_b64_tr_b16 v[{WP+4*ft+2*p}:{WP+4*ft+2*p+1}], v{vWPR} offset:{p * 1024 + ft * 32}')
    def hstore(O, so, off): e.vm('h', f'buffer_store_dwordx4 v[{O}:{O+3}], v{vL16}, s[8:11], s{so} offen offset:{off} sc1')
    if wn == 0:
        for t in range(4):
            geglu(a, acc2(6, t), acc2(7, t), acc2(8, t), acc2(9, t), TS, 40 + 4 * t, vC0); hstore(40 + 4 * t, 3, t * 1024)
        KB = 56; VB = 72; QB = 240
        for t in range(4): a(*pack(KB + 4 * t, acc2(2, t)), *pack(KB + 4 * t + 2, acc2(3, t)))
        for t in range(4): a(*pack(QB + 4 * t, acc2(0, t)), *pack(QB + 4 * t + 2, acc2(1, t)))
        for t in range(2): e.ld('qx', f'ds_write_b128 v6, v[{QB+8+4*t}:{QB+8+4*t+3}] offset:{t * 1024}')
        e.wait(l=['wp'])
        for t in range(4):
            for ft in range(2): a(mfma(96 + 8 * t + 4 * ft, WP + 4 * ft, KB + 4 * t, 0))
        for dt in range(2):
            for t in range(4): a(*pack(VB + 8 * dt + 2 * t, acc2(4 + dt, t)))
        a(*[f'v_mov_b32 v{16+i}, 0x3f803f80' for i in range(4)])
        AF = lambda kg, ft: 128 + 16 * kg + 4 * ft; KVA = lambda dt, ft: 192 + 16 * dt + 4 * ft; ZA = lambda ft: 224 + 4 * ft
        for kg in range(2):
            softmax2(a, 96 + 16 * kg, 160, TS, 40)
            if kg == 0: e.wait(v=['h']); e.run(flag(sHFO))
            for t in range(2):
                for i in range(4):
                    e.ld('pt', f'ds_write_b64 v{vPTW}, v[{40+8*t+2*i}:{41+8*t+2*i}] offset:{(2 * kg + t) * 16 * PT_ROW + i * 32}')
            for ft in range(4):
                for p in range(2):
                    d = AF(kg, ft) + 2 * p
                    e.ld(('af', kg, ft), f'ds_read_b64_tr_b16 v[{d}:{d+1}], v{vPTR} offset:{(32 * kg + 16 * p) * PT_ROW + ft * 32}')
        a(f's_mul_i32 s5, s{sWM}, {PT_W}', f's_add_u32 s5, s5, {PT_BASE}', f'v_add_u32 v7, s5, v{vL16}',
          f'v_lshrrev_b32 v5, 4, v{vLANE}', 'v_lshlrev_b32 v5, 4, v5', 'v_add_u32 v5, s5, v5')
        e.vm('hpoll', poll_load(vL4, sHFP))
        for kg in range(2):
            for ft in range(4):
                e.wait(l=[('af', kg, ft)])
                c = 0 if kg == 0 else None
                a(mfma(KVA(0, ft), AF(kg, ft), VB + 4 * kg, c), mfma(KVA(1, ft), AF(kg, ft), VB + 8 + 4 * kg, c), mfma(ZA(ft), AF(kg, ft), 16, c))
        for q in range(8): e.ld('kvp', f'ds_write_b128 v7, v[{192+4*q}:{195+4*q}] offset:{q * 1024}')
        a('s_mov_b32 exec_lo, 0x10001', 's_mov_b32 exec_hi, 0x10001')
        for ft in range(4): e.ld('kvp', f'ds_write_b128 v5, v[{ZA(ft)}:{ZA(ft)+3}] offset:{8192 + ft * 64}')
        a('s_mov_b64 exec, -1')
        e.wait(l='all'); a('s_barrier')
        e.stamp(5)
        a(f's_lshl_b32 s5, s2, 5', f's_lshl_b32 s6, s{sW}, 2', 's_add_u32 s5, s5, s6', f's_add_u32 s{sCNT}, s5, {DUMF}')
        h_start(e, 'hp0')
        phi_pair(a, QB, 96, 112, PHI)
    else:
        a(f's_add_u32 s4, s3, 8192', f's_add_u32 s6, s3, 16384')
        k = 0
        for pr in range(2):
            for t in range(4):
                O = 40 + 4 * (k & 3); k += 1
                geglu(a, acc2(4 * pr, t), acc2(4 * pr + 1, t), acc2(4 * pr + 2, t), acc2(4 * pr + 3, t), TS, O, vC0); hstore(O, [4, 6][pr], t * 1024)
        a(f's_add_u32 s4, s3, {3 * 8192}', f's_sub_u32 s6, s3, {8192 - 1024}', f's_bitcmp1_b32 s{sJ}, 0', 's_cselect_b32 s4, s6, s4')
        for t in (0, 2):
            O = 40 + 4 * (k & 3); k += 1
            geglu(a, acc2(8, t), acc2(9, t), acc2(8, t + 1), acc2(9, t + 1), TS, O, vC0); hstore(O, 4, t * 1024)
        a(f's_lshl_b32 s5, s{sWM}, 11', f's_add_u32 s6, s5, {PT_BASE}', f'v_add_u32 v7, s6, v{vL16}',
          f's_lshl_b32 s6, s{sWM}, 6', f's_add_u32 s7, s6, {PT_BASE + 8192}', f'v_add_u32 v5, s7, v{vL4}',
          f's_mul_i32 s4, s{sMT}, {KV_PART}', f's_add_u32 s4, s4, s{sKVO}', 's_add_u32 s3, s4, s5', 's_add_u32 s4, s4, s6', 's_add_u32 s4, s4, 8192',
          f's_lshl_b32 s5, s{sJ}, 7', f's_lshl_b32 s6, s{sMT}, 4', 's_add_u32 s5, s5, s6', f's_lshl_b32 s6, s{sWM}, 2', 's_add_u32 s5, s5, s6',
          f's_add_u32 s{sCNT}, s5, {KVF_}')
        e.wait(v=['h']); e.run(flag(sHFO))
        e.vm('hpoll', poll_load(vL4, sHFP))
        a('s_barrier')
        e.stamp(5)
        QB = 240; R = 192
        for q in range(2):
            for p in range(4): e.ld('kvr', f'ds_read_b128 v[{R+16*q+4*p}:{R+16*q+4*p+3}], v7 offset:{p * PT_W + q * 1024}')
        for p in range(4): e.ld('kvr', f'ds_read_b32 v{224+p}, v5 offset:{p * PT_W}')
        for t in range(2): e.ld('qx', f'ds_read_b128 v[{QB+4*t}:{QB+4*t+3}], v6 offset:{t * 1024}')
        e.wait(l=['kvr'])
        for q in range(2):
            b = R + 16 * q
            for i in (0, 2):
                a(f'v_pk_add_f32 v[{b+i}:{b+i+1}], v[{b+i}:{b+i+1}], v[{b+4+i}:{b+5+i}]', f'v_pk_add_f32 v[{b+8+i}:{b+9+i}], v[{b+8+i}:{b+9+i}], v[{b+12+i}:{b+13+i}]')
            for i in (0, 2): a(f'v_pk_add_f32 v[{b+i}:{b+i+1}], v[{b+i}:{b+i+1}], v[{b+8+i}:{b+9+i}]')
            e.vm('kvs', f'buffer_store_dwordx4 v[{b}:{b+3}], v{vL16}, s[24:27], s3 offen offset:{q * 1024} sc1')
        a('v_pk_add_f32 v[224:225], v[224:225], v[226:227]', 'v_add_f32 v224, v224, v225', 's_mov_b64 exec, 0xffff')
        e.vm('kvs', f'buffer_store_dword v224, v{vL4}, s[24:27], s4 offen sc1')
        a('s_mov_b64 exec, -1')
        h_start(e, 'hp1')
        e.wait(l='all')
        phi_pair(a, QB, 96, 112, PHI)
    return side

def k3(a):
    e = Em(a)
    for st in range(6): e.q['v'] += [('W3', st)] * 2
    for st in range(6): e.q['v'] += [('H', st)] * 2
    acc = lambda n, tau: 192 + n * 8 + tau * 4
    NS = 36; DIST = 6; S2 = 28 - DIST
    hi = [0] * 8; first = [True] * 8
    fi = [0]
    def frag(st, n):
        d = 96 + 4 * (fi[0] & 7); tag = ('f', fi[0]); fi[0] += 1
        slot = st & 7; pre = []
        if hi[n] != slot >> 2: pre = [f'v_xor_b32 v{vR+n}, 0x10000, v{vR+n}']; hi[n] ^= 1
        rd = [('ld', tag, f'ds_read_b64_tr_b16 v[{d+2*p}:{d+2*p+1}], v{vR+n} offset:{(slot & 3) * 16384 + p * 4096}') for p in range(2)]
        mm = [mfma(acc(n, tau), d, H3(st, tau), 0 if first[n] else None) for tau in range(2)]; first[n] = False
        return tag, [pre + rd[:1], rd[1:]], mm
    def phase(prev, cur, extra=()):
        extra = list(extra)
        for j in range(max(len(prev), len(cur))):
            if j < len(prev): e.wait(l=[prev[j][0]]); e(prev[j][2][0])
            if j < len(cur): e.run(cur[j][1][0])
            if j < len(prev): e(prev[j][2][1])
            if j < len(cur): e.run(cur[j][1][1])
            if extra: e.run(extra.pop(0))
        for x in extra: e.run(x)
    ev = {}
    def put(st, g, items): ev.setdefault(st, [[] for _ in range(8)])[g].extend(items)
    KV = 56; ZR = 88
    put(0, 0, flag(sCNT))
    put(0, 1, [f's_lshl_b32 s3, s{sJ}, 7', f's_add_u32 s3, s3, {KVF_}',
               f's_lshl_b32 s5, s{sW}, 10', f's_add_u32 s4, s5, s{sKVO}', f's_lshl_b32 s5, s{sW}, 5', f's_add_u32 s6, s5, s{sKVO}', 's_add_u32 s6, s6, 8192',
               f'v_lshrrev_b32 v12, 3, v{vLANE}', f'v_mul_u32_u24 v12, {KV_PART}, v12', f'v_and_b32 v13, 7, v{vLANE}', 'v_lshl_add_u32 v12, v13, 2, v12'])
    put(0, 3, [f's_lshr_b32 s5, s{sW}, 1', 's_lshl_b32 s5, s5, 10', f's_and_b32 s7, s{sW}, 1', 's_lshl_b32 s7, s7, 3', 's_add_u32 s5, s5, s7',
               f's_add_u32 s5, s5, {EXC_BASE}', f'v_add_u32 v13, s5, v{vL16}', f'v_add_u32 v15, {EXC_BASE}, v{vL16}'])
    put(0, 5, [f's_lshl_b32 s5, s{sWN}, 6', 's_lshl_b32 s7, s7, 2', 's_add_u32 s5, s5, s7', f's_and_b32 s7, s{sW}, 2', 's_lshl_b32 s7, s7, 2', 's_add_u32 s5, s5, s7',
               f's_add_u32 s5, s5, {ZB}', f'v_and_b32 v14, 3, v{vLANE}', f'v_and_b32 v16, 4, v{vLANE}', 'v_lshlrev_b32 v14, 1, v14', 'v_lshl_add_u32 v14, v16, 2, v14',
               'v_add_u32 v14, s5, v14'])
    put(0, 7, [f'v_lshrrev_b32 v16, 4, v{vLANE}', 'v_lshlrev_b32 v16, 4, v16', f'v_add_u32 v16, {ZB}, v16'])
    put(KP, 7, [('vm', 'kpoll', poll_load(vL4H, 3))])
    put(KC, 7, [('wv', ['kpoll'])] + spin('kp', vL4H, 3))
    for m in range(8):
        put(KC + 1, m, [('vm', 'kv', f'buffer_load_dwordx4 v[{KV+4*m}:{KV+4*m+3}], v{vL16}, s[24:27], s4 offen sc1'), f's_add_u32 s4, s4, {KV_PART}'])
    put(KC + 1, 7, [('vm', 'kv', f'buffer_load_dword v{ZR}, v12, s[24:27], s6 offen sc1')])
    K1 = KC + 1 + KWD
    pa = lambda d, s: [f'v_add_f32 v{d+i}, v{d+i}, v{s+i}' for i in range(4)]
    put(K1, 0, [('wv', ['kv'])] + pa(KV, KV + 4) + [f'v_add_f32_dpp v{ZR}, v{ZR}, v{ZR} row_ror:8 row_mask:0xf bank_mask:0xf'])
    put(K1, 1, pa(KV + 8, KV + 12) + [f'v_mov_b32 v{ZR+1}, v{ZR}'])
    put(K1, 2, pa(KV + 16, KV + 20) + [f'v_permlane16_swap_b32 v{ZR}, v{ZR+1}'])
    put(K1, 3, pa(KV + 24, KV + 28) + [f'v_add_f32 v{ZR}, v{ZR}, v{ZR+1}'])
    put(K1, 4, pa(KV, KV + 8) + [f'v_mov_b32 v{ZR+1}, v{ZR}'])
    put(K1, 5, pa(KV + 16, KV + 24) + [f'v_permlane32_swap_b32 v{ZR}, v{ZR+1}'])
    put(K1, 6, pa(KV, KV + 16) + [f'v_add_f32 v{ZR}, v{ZR}, v{ZR+1}'])
    put(K1, 7, pack(KV, KV) + [f'v_cvt_pk_bf16_f32 v{ZR}, v{ZR}, v{ZR}', ('ld', 'kw', f'ds_write_b64 v13, v[{KV}:{KV+1}]'), ('ld', 'kw', f'ds_write_b16 v14, v{ZR}')])
    pre = {K1 + 1: [('wl', ['kw'])]}
    AFR = 56; ZF = 72; NUM = lambda tau, dt: 80 + 8 * tau + 4 * dt; DEN = lambda tau: 4 + 4 * tau
    for s in range(2): put(K1 + 1, s, [('ld', 'kf', f'ds_read_b128 v[{ZF+4*s}:{ZF+4*s+3}], v16 offset:{s * 64}')])
    for f in range(4): put(K1 + 1, 2 + f, [('ld', 'kf', f'ds_read_b128 v[{AFR+4*f}:{AFR+4*f+3}], v15 offset:{f * 1024}')])
    put(K1 + 2, 0, [('wl', ['kf'])])
    for s in range(2):
        put(K1 + 2, s, [mfma(DEN(tau), ZF + 4 * s, PHI + 8 * tau + 4 * s, 0 if s == 0 else None) for tau in range(2)])
        for dt in range(2):
            put(K1 + 2, 2 + 2 * s + dt, [mfma(NUM(tau, dt), AFR + 8 * dt + 4 * s, PHI + 8 * tau + 4 * s, 0 if s == 0 else None) for tau in range(2)])
    put(K1 + 2, 4, [f'v_add_f32 v{DEN(tau)}, {hx(f2u(1e-6))}, v{DEN(tau)}' for tau in range(2)])
    put(K1 + 2, 5, [f'v_rcp_f32 v{DEN(tau)}, v{DEN(tau)}' for tau in range(2)])
    put(K1 + 2, 6, [f's_add_u32 s5, s{sJ}, 112', 's_lshl_b32 s5, s5, 13', f's_add_u32 s5, s5, s{sAB}', f's_lshl_b32 s6, s{sWN}, 11', 's_add_u32 s3, s5, s6',
                    f's_add_u32 s4, s{sHFO}, {OFD}'])
    for tau in range(2):
        for dt in range(2):
            put(K1 + 3, 2 * tau + dt, [f'v_mul_f32 v{NUM(tau,dt)+i}, v{NUM(tau,dt)+i}, v{DEN(tau)}' for i in range(4)])
        put(K1 + 3, 4 + tau, pack(AFR + 4 * tau, NUM(tau, 0), 4))
        put(K1 + 3, 6 + tau, [('vm', 'o', f'buffer_store_dwordx4 v[{AFR+4*tau}:{AFR+4*tau+3}], v{vL16}, s[8:11], s3 offen offset:{tau * 1024} sc1')])
    put(K1 + 3 + KFD, 7, [('wv', ['o'])] + flag(4))
    assert K1 + 3 + KFD < S2 - P2
    put(S2 - P2, 7, [f's_add_u32 s3, s{sHFP}, {OFD}', ('vm', 'opoll', poll_load(vL4, 3))])
    sw = Asm(); srd(sw, 12, sWO, 1024 * 2048)
    put(S2 - 1, 7, sw.L + [f's_lshl_b32 s{sWO3}, s{sSIDE}, 20', f's_mul_i32 s{sHO3}, s{sM3}, {ACT_MT}', f's_lshl_b32 s5, s{sSIDE}, 17',
                           f's_add_u32 s{sHO3}, s{sHO3}, s5', f's_add_u32 s{sHO3}, s{sHO3}, {112 * 8192}'])
    put(S2, 3, [('wv', ['opoll'])] + spin('op', vL4, 3))
    XR = 56; PK = 40; PT = 48; EX = 64; XU = 80
    sw = Asm(); srd(sw, 20, sX, 0x400000); srd(sw, 28, sWS, 0x400000, PART_OFF); srd(sw, 16, sOUT, 0x400000)
    put(S2 + 1, 7, sw.L + [f's_add_u32 s4, s{sXO3}, 0x8000', f's_xor_b32 s3, s{sINB}, 0x4000', f's_xor_b32 s6, s{sPFO}, 32', f'v_xor_b32 v12, 0x4000, v{vEX}'])
    put(NS - 4, 1, [('vm', 'x', f'buffer_load_dwordx4 v[{XR}:{XR+3}], v{vX}, s[20:23], s{sXO3} offen')])
    put(NS - 4, 2, [('vm', 'x', f'buffer_load_dwordx4 v[{XR+4}:{XR+7}], v{vX}, s[20:23], s4 offen')])
    prev = []
    for s in range(NS):
        e.wait(v=[('W3', s), ('H', s)])
        if s < 28 and s % 7 in (1, 5):
            a(f's_cmp_eq_u32 s{sWN}, {1 if s % 7 == 1 else 0}', 's_cselect_b64 exec, -1, 0',
              f'v_swap_b32 v{H3(s,0)+2}, v{H3(s,1)}', f'v_swap_b32 v{H3(s,0)+3}, v{H3(s,1)+1}', 's_mov_b64 exec, -1')
        e.run(pre.get(s, []))
        a('s_barrier')
        if s == 0: e.stamp(6)
        if s == NS - DEFER: e.stamp(7)
        x = [[] for _ in range(8)]
        if s + DIST < NS:
            w = k3_wdma(s + DIST); h = k3_hld(s + DIST)
            if s < NS - DEFER: x[0] += w[0]; x[2] += w[1]; x[4] += h[0]; x[6] += h[1]
            else: x[0] += w[0]; x[1] += w[1]; x[2] += h[0]; x[3] += h[1]
        for g in range(8): x[g] = x[g] + ev.get(s, [[]] * 8)[g]
        if s < NS - DEFER:
            c0 = [frag(s, n) for n in range(4)]; phase(prev, c0, x[:4])
            c1 = [frag(s, n) for n in range(4, 8)]; phase(c0, c1, x[4:]); prev = c1
        else:
            c0 = [frag(s, n) for n in (6, 7, 4, 5)]; phase(prev, c0, x); prev = c0
    G = lambda i: [frag(NS - DEFER + i, n) for n in (2, 3, 0, 1)] if i < DEFER else []
    blk = lambda b: 192 + 16 * b
    wr = lambda b: [('ld', 'ew', f'ds_write_b128 v{vEX}, v[{blk(b)+4*j}:{blk(b)+4*j+3}] offset:{j * 1024}') for j in range(4)]
    rdx = [('ld', 'er', f'ds_read_b128 v[{EX+4*j}:{EX+4*j+3}], v12 offset:{j * 1024}') for j in range(4)]
    add = lambda b: [f'v_pk_add_f32 v[{blk(b)+2*j}:{blk(b)+2*j+1}], v[{blk(b)+2*j}:{blk(b)+2*j+1}], v[{EX+2*j}:{EX+2*j+1}]' for j in range(8)]
    g0 = G(0); phase(prev, g0)
    e.stamp(8)
    g1 = G(1); phase(g0, g1, [[w] for w in wr(3)])
    e.wait(l=['ew']); a('s_barrier'); e.run(rdx)
    g2 = G(2); phase(g1, g2)
    e.wait(l=['er']); a(*add(2)); a(*pack(PK, blk(2), 8))
    for j in range(2): e.vm('ps', f'buffer_store_dwordx4 v[{PK+4*j}:{PK+4*j+3}], v{vL16}, s[28:31], s3 offen offset:{j * 1024} sc1')
    prev = g2
    unp = lambda d, s: [f'v_lshlrev_b32 v{d}, 16, v{s}', f'v_and_b32 v{d+1}, 0xffff0000, v{s}']
    pollp = f'buffer_load_dword v{vPOLL}, off, s[24:27], s{sPFO} sc1'
    for i in range(3, DEFER + 1):
        x = [[], [], [], []]
        if i == 3: x = [[('wv', ['x'])] + unp(XU + 4 * j, XR + 2 * j) + unp(XU + 4 * j + 2, XR + 2 * j + 1) for j in range(4)]
        if i == FG: x[3] = [('wv', ['ps'])] + flag(6)
        if i == PG: x[3] = x[3] + [('vm', 'ppoll', pollp)]
        g = G(i); phase(prev, g, x); prev = g
    a('s_barrier'); e.run(wr(1))
    e.stamp(9)
    e.wait(v=['ppoll'])
    a('s_mov_b32 s7, 0', 'L_pp:', f'v_cmp_ne_u32 vcc, s{sNON}, v{vPOLL}', 's_cmp_eq_u64 vcc, 0', 's_cbranch_scc1 L_pp_ok',
      's_add_u32 s7, s7, 1', f's_cmp_ge_u32 s7, {hx(SPIN)}', 's_cbranch_scc1 L_pp_ok', pollp, 's_waitcnt vmcnt(0)', 's_branch L_pp', 'L_pp_ok:')
    for j in range(2): e.vm('pl', f'buffer_load_dwordx4 v[{PT+4*j}:{PT+4*j+3}], v{vL16}, s[28:31], s{sINB} offen offset:{j * 1024} sc1')
    e.wait(l='all'); a('s_barrier'); e.run(rdx)
    e.stamp(10)
    e.wait(l='all'); a(*add(0))
    e.wait(v=['pl'])
    for j in range(8): a(*unp(EX + 2 * j, PT + j))
    a(*add(0))
    for tau in range(2):
        lo = acc(0, tau); hh = acc(1, tau); r = XU + 8 * tau; o = XR + 4 * tau
        for i in range(4): a(f'v_permlane16_swap_b32 v{lo+i}, v{hh+i}')
        for i in range(2):
            a(f'v_pk_add_f32 v[{lo+2*i}:{lo+2*i+1}], v[{lo+2*i}:{lo+2*i+1}], v[{r+2*i}:{r+2*i+1}]',
              f'v_pk_add_f32 v[{hh+2*i}:{hh+2*i+1}], v[{hh+2*i}:{hh+2*i+1}], v[{r+4+2*i}:{r+5+2*i}]')
        a(*pack(o, lo), *pack(o + 2, hh))
        a(f'buffer_store_dwordx4 v[{o}:{o+3}], v{vX}, s[16:19], s{[sXO3, 4][tau]} offen')
    a(f's_or_b32 s5, s2, s{sW}', 's_cbranch_scc1 L_fin', f's_mov_b32 s5, {FL}', *flag_store(5), 'L_fin:')

def kernel():
    a = Asm(); kn = NAME + '_kernel'
    a('.text', f'.globl {kn}', '.p2align 8', f'.type {kn},@function', f'{kn}:')
    entry(a)
    e = Em(a)
    for st in range(2):
        w = k2_dma(st, 0)[1]
        e.run(w[0] + w[1])
    a(f's_cmp_lg_u32 s{sWN}, 0', 's_cbranch_scc1 L_e1')
    for st in range(2): e.run(k2_dma(st, 0)[1][2])
    a('s_branch L_e2', 'L_e1:')
    srd(a, 76, sPHI, 65536)
    a(f's_lshl_b32 s6, s{sJ}, 11', f's_mov_b32 m0, {WPHI_BASE}', f'buffer_load_dwordx4 v{vL16}, s[76:79], s6 offen lds',
      f'buffer_load_dwordx4 v{vL16}, s[76:79], s6 offen offset:1024 lds')
    a('L_e2:')
    c0 = setup(a)
    a(f's_cmp_lg_u32 s{sPI1}, -2', 's_cbranch_scc1 L_e3', f'buffer_load_dword v{vDUM}, v{vPG}, s[80:83], s{sPG} offen',
      f's_cmp_lg_u32 s{sWN}, 0', 's_cbranch_scc1 L_e3', f'buffer_load_dword v{vDUM}, v{vPQ}, s[20:23], s{sPQ} offen', 'L_e3:')
    layernorm(a, 7)
    srd(a, 8, sWS, 0x400000, XN_OFF)
    a('s_lshr_b32 s5, s2, 5', 's_lshl_b32 s5, s5, 19', 's_bfe_u32 s6, s2, 0x40001', 's_lshl_b32 s6, s6, 10', 's_add_u32 s5, s5, s6',
      's_and_b32 s6, s2, 1', 's_lshl_b32 s6, s6, 7', 's_add_u32 s5, s5, s6', 's_add_u32 s6, s5, 0x8000')
    a('buffer_store_dwordx4 v[96:99], v137, s[8:11], s5 offen sc1', 'buffer_store_dwordx4 v[100:103], v137, s[8:11], s6 offen sc1')
    a('s_mov_b32 s5, 0x9E3779B1', 's_waitcnt vmcnt(8)', f'v_mul_lo_u32 v{vNON}, v{vNON}, s5', f'v_add_u32 v{vNON}, 0x7F4A7C15, v{vNON}', f'v_readfirstlane_b32 s{sNON}, v{vNON}')
    for r in list(range(104, 137)) + list(range(138, 256)) + [137] + list(range(96, 104)): a(f'v_mov_b32 v{r}, 0')
    a('s_lshl_b32 s5, s2, 2', f's_add_u32 s5, s5, {LNF}', f's_lshl_b32 s6, s{sMT}, 7', f's_add_u32 s6, s6, {LNF}')
    a('s_waitcnt vmcnt(0)', 's_barrier')
    stamp(a, 2)
    a(f's_cmp_lg_u32 s{sW}, 3', 's_cbranch_scc1 L_lnp_ok', *flag_store(5), poll_load(vL4H, 6), 's_waitcnt vmcnt(0)', *spin('lnp', vL4H, 6))
    a('s_barrier', f's_cmp_lg_u32 s{sWN}, 0', 's_cbranch_scc1 L_wn1')
    side = k2_path(a, 0, c0)
    a('s_branch L_k3', 'L_wn1:')
    side += k2_path(a, 1, c0)
    a('s_nop 7', 'L_k3:')
    k3(a)
    if PROF:
        a('s_waitcnt vmcnt(0)'); stamp(a, 11)
        srd(a, 96, sWS, 0x100000, PROF_OFF)
        a('s_lshl_b32 s100, s2, 11', f's_lshl_b32 s101, s{sW}, 8', 's_add_u32 s100, s100, s101', f'buffer_store_dword v{vST}, v{vL4}, s[96:99], s100 offen')
    a('L_done:', 's_endpgm', *side)
    desc = f'''.section .rodata,"a"
.p2align 6
.amdhsa_kernel {kn}
  .amdhsa_next_free_vgpr 256
  .amdhsa_next_free_sgpr 102
  .amdhsa_accum_offset 256
  .amdhsa_group_segment_fixed_size 0
  .amdhsa_kernarg_size 88
  .amdhsa_user_sgpr_count 2
  .amdhsa_user_sgpr_kernarg_segment_ptr 1
  .amdhsa_system_sgpr_workgroup_id_x 1
.end_amdhsa_kernel
'''
    return a.finish(report=bool(env('REPORT', 0))) + desc

def main(out):
    hdr = open('cdna_kernels/%s.s.ref' % NAME).read().split('\n')
    top = [l for l in hdr if l.startswith(';') and '@launch' not in l and 'Override launch' not in l and 'grid=ceil' not in l]
    top += ['; Generated by gen/gen_f.py (hand-written generator; no compiler output).',
            f'; @launch grid=(256,1,1) block=(512,1,1) lds={LDS}', '.amdgcn_target "amdgcn-amd-amdhsa--gfx950"']
    open(out, 'w').write('\n'.join(top) + '\n' + kernel())

if __name__ == '__main__':
    main(sys.argv[1] if len(sys.argv) > 1 else 'cdna_kernels/%s.s' % NAME)
```

```python
import sys, struct, os
from asmlib import Asm, check_loop

NAME = 'parallel_sum__linear_kernel_hedgehog__geglu_ffn__prompt'
def f2u(x): return struct.unpack('<I', struct.pack('<f', x))[0]
def hx(x): return '0x%x' % x
env = lambda k, d: int(os.environ.get(k, str(d)))

XN_OFF = 0
ACT_OFF = 0x400000
ACT_MT = 144 * 8192
KV_OFF = 0x1A00000
KV_PART = 2112 * 4
KV_SIZE = 256 * KV_PART
FL = KV_SIZE
FS = env('FS', 5)
LNF = FL + (1024 << FS); HF = FL + (2048 << FS); KVF_ = FL + (10240 << FS); OFD = 12288 << FS; PFL = FL + (22528 << FS); DUMF = FL + (32768 << FS)
KVSRD_SIZE = FL + (40960 << FS)
PART_OFF = 0x2000000
assert KV_OFF + KVSRD_SIZE <= PART_OFF
LOG2E = 1.4426950408889634
PROF = env('PROF', 0); PROF_OFF = 0x8000000
EXP = os.environ.get('EXP', '')
LA = env('LA', 2); TST = env('TST', 0); WPRE = env('WPRE', 0)
DEFER = env('DEFER', 8); KP = env('KP', 4); KC = env('KC', 6); KWD = env('KWD', 3); KFD = env('KFD', 3); P2 = env('P2', 2)
FG = env('FG', 5); PG = env('PG', 7)
SPIN = 0x20000; SLP = env('SLP', 1)

X_BASE = 0; X_ST = 16384
GU_BASE = 65536; GU_ST = 14592; UP_OFF = 7168 + 128
QKV_BASE = GU_BASE + 4 * GU_ST; QKV_ST = 6144
LN_BASE = 153600
WPHI_BASE = 161792
PT_BASE = 98304; PT_ROW = 144; PT_W = 64 * PT_ROW
QX_BASE = PT_BASE + 4 * PT_W
EXC_BASE = 131072
ZB = EXC_BASE + 4096
LDS = 163840
MF = 'v_mfma_f32_16x16x32_bf16'

sX, sWQ, sPHI, sWO, sG, sU, sWD, sOUT, sWS = 40, 42, 44, 46, 48, 50, 52, 54, 56
sNON, sW, sWM, sWN, sMT, sJ = 58, 59, 60, 61, 62, 63
sXO, sDO, sQO, sDS, sPQ, sPI1 = 64, 65, 66, 67, 68, 69
sSIDE, sM3, sNT, sOWN, sWO3, sHO3 = 70, 71, 72, 73, 74, 75
sL, sC1 = 84, 86
sAB, sHFO, sHFP, sKVO, sPFO, sXO3, sINB, sM03 = 88, 89, 90, 91, 92, 93, 94, 95
sCNT, sPI2, sPD, sPG = 36, 37, 38, 39
vLANE, vL16, vST = 1, 2, 3
vDX, vD2, vD3, vD4, vRX, vRG, vRQ0, vRQ1, vPG, vPQ, vPD, vDUM = 4, 5, 6, 7, 8, 9, 10, 11, 12, 13, 14, 15
vDW, vDH, vX, vR, vL4, vNON, vPOLL, vEX, vPTW, vPTR, vWPR, vL4H = 20, 22, 23, 24, 32, 33, 34, 35, 36, 37, 38, 39

def stamp(a, i):
    if not PROF: return
    a('s_memtime s[96:97]', 's_memrealtime s[98:99]', 's_waitcnt lgkmcnt(0)',
      f'v_writelane_b32 v{vST}, s96, {2*i}', f'v_writelane_b32 v{vST}, s98, {2*i+1}')

def srd(a, d, lo, size, off=0):
    if off:
        a(f's_add_u32 s{d}, s{lo}, {hx(off)}', f's_addc_u32 s{d+1}, s{lo+1}, 0')
    else:
        a(f's_mov_b32 s{d}, s{lo}', f's_mov_b32 s{d+1}, s{lo+1}')
    a(f's_and_b32 s{d+1}, s{d+1}, 0xffff', f's_mov_b32 s{d+2}, {hx(size)}', f's_mov_b32 s{d+3}, 0x20000')

class Em:
    def __init__(s, a): s.a = a; s.q = {'v': [], 'l': []}; s.done = {'v': 0, 'l': 0}
    def __call__(s, *t): s.a(*t)
    def vm(s, tag, *t): s.a(*t); s.q['v'].append(tag)
    def ld(s, tag, *t): s.a(*t); s.q['l'].append(tag)
    def _n(s, k, tags, cap):
        q = s.q[k]
        if tags == 'all': last = len(q) - 1
        else:
            idx = [i for i, t in enumerate(q) if t in tags]
            assert idx, tags
            last = idx[-1]
        if last < s.done[k]: return None
        n = min(len(q) - 1 - last, cap); s.done[k] = len(q) - n
        return n
    def wait(s, v=None, l=None):
        p = []
        if v is not None:
            n = s._n('v', v, 63)
            if n is not None: p.append(f'vmcnt({n})')
        if l is not None:
            n = s._n('l', l, 15)
            if n is not None: p.append(f'lgkmcnt({n})')
        if p: s.a('s_waitcnt ' + ' '.join(p))
    def run(s, items):
        for it in items:
            if isinstance(it, str): s.a(it)
            elif it[0] == 'vm': s.vm(*it[1:])
            elif it[0] == 'ld': s.ld(*it[1:])
            elif it[0] == 'wv': s.wait(v=it[1])
            elif it[0] == 'wl': s.wait(l=it[1])
            else: raise ValueError(it)
    def stamp(s, i):
        if PROF: stamp(s.a, i); s.done['l'] = len(s.q['l'])

def mfma(d, A, B, c=None):
    return f'{MF} v[{d}:{d+3}], v[{A}:{A+3}], v[{B}:{B+3}], ' + (f'v[{d}:{d+3}]' if c is None else '0')

def flag_store(soff):
    return ['s_mov_b64 exec, 1', f'buffer_store_dword v{vNON}, off, s[24:27], s{soff} sc1', 's_mov_b64 exec, -1']
def poll_load(voff, soff, off=0):
    return f'buffer_load_dword v{vPOLL}, v{voff}, s[24:27], s{soff} offen offset:{off} sc1'
def spin(tag, voff, soff, off=0):
    return ['s_mov_b32 s7, 0', f'L_{tag}:', f'v_cmp_ne_u32 vcc, s{sNON}, v{vPOLL}', 's_cmp_eq_u64 vcc, 0', f's_cbranch_scc1 L_{tag}_ok',
            's_add_u32 s7, s7, 1', f's_cmp_ge_u32 s7, {hx(SPIN)}', f's_cbranch_scc1 L_{tag}_ok',
            f's_sleep {SLP}', poll_load(voff, soff, off), 's_waitcnt vmcnt(0)', f's_branch L_{tag}', f'L_{tag}_ok:']

def red4(a, m, op, mid):
    a(f'v_permlane32_swap_b32 v{m[0]}, v{m[2]}', f'v_permlane32_swap_b32 v{m[1]}, v{m[3]}',
      f'{op} v{m[0]}, v{m[0]}, v{m[2]}', f'{op} v{m[1]}, v{m[1]}, v{m[3]}',
      f'v_permlane16_swap_b32 v{m[0]}, v{m[1]}', f'{op} v{m[0]}, v{m[0]}, v{m[1]}', mid,
      f'v_mov_b32 v{m[1]}, v{m[0]}', f'v_permlane16_swap_b32 v{m[0]}, v{m[1]}',
      f'v_mov_b32 v{m[2]}, v{m[0]}', f'v_mov_b32 v{m[3]}, v{m[1]}',
      f'v_permlane32_swap_b32 v{m[0]}, v{m[2]}', f'v_permlane32_swap_b32 v{m[1]}, v{m[3]}')

def softmax2(a, P, E, T, O):
    for i in range(8): a(f'v_cvt_pk_bf16_f32 v{T+i}, v{P+2*i}, v{P+2*i+1}')
    for i in range(8): a(f'v_lshlrev_b32 v{P+2*i}, 16, v{T+i}', f'v_and_b32 v{P+2*i+1}, 0xffff0000, v{T+i}')
    m = [T, T + 2, T + 4, T + 6]
    src = [(P, ''), (P + 8, ''), (P, '-'), (P + 8, '-')]
    for q, (p, n) in enumerate(src): a(f'v_max3_f32 v{m[q]}, {n}v{p}, {n}v{p+1}, {n}v{p+2}')
    for i in (3, 5):
        for q, (p, n) in enumerate(src): a(f'v_max3_f32 v{m[q]}, v{m[q]}, {n}v{p+i}, {n}v{p+i+1}')
    for q, (p, n) in enumerate(src): a(f'v_max3_f32 v{m[q]}, v{m[q]}, {n}v{p+7}, {n}v{p+7}')
    red4(a, m, 'v_max_f32', f'v_mul_f32 v{m[0]}, s{sL}, v{m[0]}')
    for i in range(8):
        t = i >> 2
        a(f'v_pk_fma_f32 v[{E+2*i}:{E+2*i+1}], v[{P+2*i}:{P+2*i+1}], s[{sL}:{sL+1}], v[{m[t]}:{m[t]+1}] op_sel_hi:[1,1,0] neg_lo:[0,0,1] neg_hi:[0,0,1]',
          f'v_pk_fma_f32 v[{P+2*i}:{P+2*i+1}], v[{P+2*i}:{P+2*i+1}], s[{sL}:{sL+1}], v[{m[2+t]}:{m[2+t]+1}] op_sel_hi:[1,1,0] neg_lo:[1,0,1] neg_hi:[1,0,1]')
    for i in range(16): a(f'v_exp_f32 v{E+i}, v{E+i}', f'v_exp_f32 v{P+i}, v{P+i}')
    src = [E, E + 8, P, P + 8]
    for q, p in enumerate(src): a(f'v_pk_add_f32 v[{m[q]}:{m[q]+1}], v[{p}:{p+1}], v[{p+2}:{p+3}]')
    for i in (4, 6):
        for q, p in enumerate(src): a(f'v_pk_add_f32 v[{m[q]}:{m[q]+1}], v[{m[q]}:{m[q]+1}], v[{p+i}:{p+i+1}]')
    for q in range(4): a(f'v_add_f32 v{m[q]}, v{m[q]}, v{m[q]+1}')
    red4(a, m, 'v_add_f32', f'v_rcp_f32 v{m[0]}, v{m[0]}')
    for q, p in enumerate(src):
        for i in range(4): a(f'v_pk_mul_f32 v[{p+2*i}:{p+2*i+1}], v[{p+2*i}:{p+2*i+1}], v[{m[q]}:{m[q]+1}] op_sel_hi:[1,0]')
    for q, p in enumerate(src):
        o = O + (q & 1) * 8 + (q >> 1) * 4
        for i in range(4): a(f'v_cvt_pk_bf16_f32 v{o+i}, v{p+2*i}, v{p+2*i+1}')

def geglu(a, G0, U0, G1, U1, T, O, vC0):
    g = [G0, G0 + 2, G1, G1 + 2]; u = [U0, U0 + 2, U1, U1 + 2]
    for i in range(4): a(f'v_pk_mul_f32 v[{T+2*i}:{T+2*i+1}], v[{g[i]}:{g[i]+1}], v[{g[i]}:{g[i]+1}]')
    for i in range(4): a(f'v_pk_fma_f32 v[{T+2*i}:{T+2*i+1}], v[{T+2*i}:{T+2*i+1}], s[{sC1}:{sC1+1}], v[{vC0}:{vC0+1}]')
    for i in range(4): a(f'v_pk_mul_f32 v[{T+2*i}:{T+2*i+1}], v[{T+2*i}:{T+2*i+1}], v[{g[i]}:{g[i]+1}]')
    for i in range(8): a(f'v_exp_f32 v{T+i}, v{T+i}')
    for i in range(4):
        a(f'v_pk_mul_f32 v[{g[i]}:{g[i]+1}], v[{g[i]}:{g[i]+1}], v[{u[i]}:{u[i]+1}]',
          f'v_pk_add_f32 v[{T+2*i}:{T+2*i+1}], v[{T+2*i}:{T+2*i+1}], 1.0 op_sel_hi:[1,0]')
    for i in range(8): a(f'v_rcp_f32 v{T+i}, v{T+i}')
    for i in range(4): a(f'v_pk_mul_f32 v[{g[i]}:{g[i]+1}], v[{g[i]}:{g[i]+1}], v[{T+2*i}:{T+2*i+1}]')
    for i in range(4): a(f'v_cvt_pk_bf16_f32 v{O+i}, v{g[i]}, v{g[i]+1}')

def layernorm(a, nyoung):
    X = 96; F = 104; Tm = 120; MEAN = 131; VAR = 132; vRD, vWR = 134, 135
    a(f'v_and_b32 v{vRD}, 7, v{vLANE}', f'v_lshlrev_b32 v{vRD}, 5, v{vRD}', f'v_add_u32 v{vRD}, {LN_BASE}, v{vRD}',
      f's_lshl_b32 s5, s{sW}, 2', f'v_add_u32 v{vWR}, s5, v{vRD}')
    a(f's_waitcnt vmcnt({nyoung})')
    stamp(a, 1)
    for i in range(8): a(f'v_lshlrev_b32 v{F+2*i}, 16, v{X+i}', f'v_and_b32 v{F+2*i+1}, 0xffff0000, v{X+i}')
    def cross(r, off):
        a(f'v_add_f32_dpp v{r}, v{r}, v{r} row_ror:8 row_mask:0xf bank_mask:0xf',
          f'v_mov_b32 v{Tm}, v{r}', f'v_permlane16_swap_b32 v{r}, v{Tm}', f'v_add_f32 v{r}, v{r}, v{Tm}',
          f'v_mov_b32 v{Tm}, v{r}', f'v_permlane32_swap_b32 v{r}, v{Tm}', f'v_add_f32 v{r}, v{r}, v{Tm}')
        a(f'ds_write_b32 v{vWR}, v{r} offset:{off}', 's_waitcnt lgkmcnt(0)', 's_barrier',
          f'ds_read_b128 v[{Tm}:{Tm+3}], v{vRD} offset:{off}', f'ds_read_b128 v[{Tm+4}:{Tm+7}], v{vRD} offset:{off+16}',
          's_waitcnt lgkmcnt(0)',
          f'v_pk_add_f32 v[{Tm}:{Tm+1}], v[{Tm}:{Tm+1}], v[{Tm+2}:{Tm+3}]', f'v_pk_add_f32 v[{Tm+4}:{Tm+5}], v[{Tm+4}:{Tm+5}], v[{Tm+6}:{Tm+7}]',
          f'v_pk_add_f32 v[{Tm}:{Tm+1}], v[{Tm}:{Tm+1}], v[{Tm+4}:{Tm+5}]', f'v_add_f32 v{r}, v{Tm}, v{Tm+1}',
          f'v_mul_f32 v{r}, {hx(f2u(1.0/1024))}, v{r}')
    for i in range(4): a(f'v_pk_add_f32 v[{Tm+2*i}:{Tm+2*i+1}], v[{F+4*i}:{F+4*i+1}], v[{F+4*i+2}:{F+4*i+3}]')
    a(f'v_pk_add_f32 v[{Tm}:{Tm+1}], v[{Tm}:{Tm+1}], v[{Tm+2}:{Tm+3}]', f'v_pk_add_f32 v[{Tm+4}:{Tm+5}], v[{Tm+4}:{Tm+5}], v[{Tm+6}:{Tm+7}]',
      f'v_pk_add_f32 v[{Tm}:{Tm+1}], v[{Tm}:{Tm+1}], v[{Tm+4}:{Tm+5}]', f'v_add_f32 v{MEAN}, v{Tm}, v{Tm+1}')
    cross(MEAN, 0)
    sub = lambda i, d: f'v_pk_add_f32 v[{d}:{d+1}], v[{F+2*i}:{F+2*i+1}], v[{MEAN-1}:{MEAN}] op_sel:[0,1] op_sel_hi:[1,1] neg_lo:[0,1] neg_hi:[0,1]'
    for i in range(4): a(sub(i, Tm + 2 * i))
    a(f'v_pk_mul_f32 v[{VAR}:{VAR+1}], v[{Tm}:{Tm+1}], v[{Tm}:{Tm+1}]', f'v_pk_mul_f32 v[128:129], v[{Tm+2}:{Tm+3}], v[{Tm+2}:{Tm+3}]',
      f'v_pk_fma_f32 v[{VAR}:{VAR+1}], v[{Tm+4}:{Tm+5}], v[{Tm+4}:{Tm+5}], v[{VAR}:{VAR+1}]', f'v_pk_fma_f32 v[128:129], v[{Tm+6}:{Tm+7}], v[{Tm+6}:{Tm+7}], v[128:129]')
    for i in range(4): a(sub(4 + i, Tm + 2 * i))
    for i in range(4):
        d = VAR if i % 2 == 0 else 128
        a(f'v_pk_fma_f32 v[{d}:{d+1}], v[{Tm+2*i}:{Tm+2*i+1}], v[{Tm+2*i}:{Tm+2*i+1}], v[{d}:{d+1}]')
    a(f'v_pk_add_f32 v[{VAR}:{VAR+1}], v[{VAR}:{VAR+1}], v[128:129]', f'v_add_f32 v{VAR}, v{VAR}, v{VAR+1}')
    cross(VAR, 256)
    def rbf(r): a(f'v_cvt_pk_bf16_f32 v{r}, v{r}, v{r}', f'v_and_b32 v{r}, 0xffff0000, v{r}')
    rbf(MEAN); rbf(VAR)
    a(f'v_add_f32 v{VAR}, {hx(f2u(1e-5))}, v{VAR}'); rbf(VAR)
    a(f'v_sqrt_f32 v{VAR}, v{VAR}'); rbf(VAR)
    a(f'v_rcp_f32 v{VAR}, v{VAR}')
    for i in range(8): a(sub(i, F + 2 * i))
    for i in range(8): a(f'v_cvt_pk_bf16_f32 v{X+i}, v{F+2*i}, v{F+2*i+1}')
    for i in range(8): a(f'v_lshlrev_b32 v{F+2*i}, 16, v{X+i}', f'v_and_b32 v{F+2*i+1}, 0xffff0000, v{X+i}')
    for i in range(8): a(f'v_pk_mul_f32 v[{F+2*i}:{F+2*i+1}], v[{F+2*i}:{F+2*i+1}], v[{VAR}:{VAR+1}] op_sel_hi:[1,0]')
    for i in range(8): a(f'v_cvt_pk_bf16_f32 v{X+i}, v{F+2*i}, v{F+2*i+1}')

def k3_wdma(st):
    slot = st & 7
    return [[f's_add_u32 m0, s{sM03}, {slot * 16384}', ('vm', ('W3', st), f'buffer_load_dwordx4 v{vDW}, s[12:15], s{sWO3} offen lds')],
            [('vm', ('W3', st), f'buffer_load_dwordx4 v{vDW+1}, s[12:15], s{sWO3} offen offset:1024 lds'), f's_add_u32 s{sWO3}, s{sWO3}, 0x20000']]
H3 = lambda st, tau: 128 + (st & 7) * 8 + tau * 4
def k3_hld(st):
    return [[('vm', ('H', st), f'buffer_load_dwordx4 v[{H3(st,0)}:{H3(st,0)+3}], v{vDH}, s[8:11], s{sHO3} offen sc1')],
            [('vm', ('H', st), f'buffer_load_dwordx4 v[{H3(st,1)}:{H3(st,1)+3}], v{vDH}, s[8:11], s{sHO3} offen offset:1024 sc1'), f's_add_u32 s{sHO3}, s{sHO3}, 0x4000']]
def flag(soff, tag='flag'):
    f = flag_store(soff)
    return [f[0], ('vm', tag, f[1]), f[2]]

def entry(a):
    a('s_cmp_ge_u32 s2, 256', 's_cbranch_scc1 L_done')
    a('s_load_dwordx8 s[40:47], s[0:1], 0', 's_load_dwordx8 s[48:55], s[0:1], 40', 's_load_dwordx2 s[56:57], s[0:1], 80')
    a('v_lshrrev_b32 v16, 6, v0', f'v_and_b32 v{vLANE}, 63, v0', f'v_readfirstlane_b32 s{sW}, v16', f'v_lshlrev_b32 v{vL16}, 4, v{vLANE}')
    a(f'v_and_b32 v17, 7, v{vLANE}', f'v_bfe_u32 v18, v{vLANE}, 3, 2', f'v_lshrrev_b32 v19, 5, v{vLANE}',
      'v_lshlrev_b32 v136, 11, v17', 'v_lshl_add_u32 v136, v16, 8, v136', 'v_lshl_add_u32 v136, v19, 6, v136', 'v_lshl_add_u32 v136, v18, 3, v136',
      's_lshl_b32 s3, s2, 14')
    a('s_waitcnt lgkmcnt(0)')
    stamp(a, 0)
    srd(a, 8, sX, 0x400000)
    for i in range(2):
        for h in range(2):
            a(f'buffer_load_dwordx2 v[{96+4*i+2*h}:{97+4*i+2*h}], v136, s[8:11], s3 offen offset:{i*128+h*32}')
    srd(a, 24, sWS, KVSRD_SIZE, KV_OFF)
    a(f's_mov_b32 s5, {FL}', f'buffer_load_dword v{vNON}, off, s[24:27], s5 sc1')
    a('v_lshl_add_u32 v137, v16, 2, v19', 'v_lshlrev_b32 v137, 14, v137', 'v_lshl_add_u32 v137, v18, 8, v137', 'v_lshl_add_u32 v137, v17, 4, v137')
    a('s_and_b32 s3, s2, 7', 's_lshr_b32 s4, s2, 3', f's_and_b32 s{sMT}, s4, 7',
      's_lshr_b32 s4, s4, 3', 's_lshl_b32 s3, s3, 2', f's_add_u32 s{sJ}, s3, s4')
    a(f's_and_b32 s{sWM}, s{sW}, 3', f's_lshr_b32 s{sWN}, s{sW}, 2')
    a('v_mul_u32_u24 v16, 4682, v0', 'v_lshrrev_b32 v16, 16, v16', 'v_mul_u32_u24 v17, 14, v16', 'v_sub_u32 v17, v0, v17',
      f's_and_b32 s5, s{sJ}, 1', 's_lshl_b32 s5, s5, 1', 'v_add_u32 v17, s5, v17', 'v_subrev_u32 v18, 14, v17', 'v_min_u32 v17, v17, v18',
      'v_mul_u32_u24 v16, 7168, v16', 'v_lshl_add_u32 v16, v17, 4, v16',
      f's_mul_i32 s5, s{sJ}, 224', f'v_add_u32 v{vD2}, s5, v16', f'v_mov_b32 v{vD3}, v{vD2}')
    a(f'v_lshrrev_b32 v16, 2, v{vLANE}', 'v_mul_u32_u24 v16, 6144, v16',
      f'v_lshrrev_b32 v18, 3, v{vLANE}', 'v_and_b32 v18, 2, v18', f'v_and_b32 v17, 3, v{vLANE}', 'v_xor_b32 v17, v17, v18',
      'v_lshl_add_u32 v16, v17, 4, v16', f's_lshl_b32 s5, s{sJ}, 6', 'v_add_u32 v16, s5, v16')
    a(f's_lshr_b32 s5, s{sWM}, 1', 's_lshl_b32 s5, s5, 11', f's_and_b32 s6, s{sWM}, 1', 's_mul_i32 s6, s6, %d' % (16 * 6144),
      's_add_u32 s5, s5, s6', f'v_add_u32 v{vD4}, s5, v16')
    srd(a, 12, sG, 1024 * 7168); srd(a, 16, sU, 1024 * 7168); srd(a, 20, sWQ, 1024 * 6144)
    a(f's_mov_b32 s{sDS}, {32 * 7168}', f's_lshl_b32 s5, s{sW}, 10',
      f's_add_u32 s29, s5, {GU_BASE}', f's_add_u32 s30, s5, {GU_BASE + UP_OFF}',
      f's_lshl_b32 s5, s{sWM}, 10', f's_add_u32 s31, s5, {QKV_BASE}', f's_lshl_b32 s28, s{sW}, 11', f's_mov_b32 s33, {GU_ST}')
    a(f's_cmp_lg_u32 s{sW}, 7', 's_cbranch_scc1 L_not7')
    a('s_mov_b32 s12, s20', 's_mov_b32 s13, s21', 's_mov_b32 s14, s22', 's_mov_b32 s16, s20', 's_mov_b32 s17, s21', 's_mov_b32 s18, s22',
      f's_mov_b32 s{sDS}, {32 * 6144}', f's_mov_b32 s29, {QKV_BASE + 4096}', f's_mov_b32 s30, {QKV_BASE + 5120}', f's_mov_b32 s33, {QKV_ST}',
      f'v_add_u32 v{vD2}, 4096, v16', f'v_add_u32 v{vD3}, {4096 + 16 * 6144}, v16')
    a('L_not7:')
    a('s_mov_b32 s32, 0', 's_lshl_b32 s34, s33, 1', 's_add_u32 s35, s34, s33',
      f's_lshl_b32 s{sXO}, s{sMT}, 19', f's_mov_b32 s{sDO}, 0', f's_mov_b32 s{sQO}, 0')

def entry_touch(a, n):
    a(f's_cmp_lt_u32 s{sW}, 3', f's_cselect_b32 s4, s{sPD}, 0', 's_mov_b32 s3, s82', 's_cselect_b32 s82, s82, 0')
    for i in range(n): a(touch[0][2], f's_add_u32 s{sPG}, s{sPG}, s4')
    a('s_mov_b32 s82, s3')

def setup(a):
    a(f'v_add_u32 v{vDX}, s28, v{vL16}', f'v_and_b32 v{vL4H}, 31, v{vLANE}', f'v_lshlrev_b32 v{vL4H}, {2 + FS}, v{vL4H}',
      f'v_lshrrev_b32 v16, 2, v{vLANE}', f'v_and_b32 v{vL4}, 3, v{vLANE}', f'v_lshlrev_b32 v{vL4}, 2, v{vL4}', f'v_lshl_add_u32 v{vL4}, v16, 7, v{vL4}')
    a('s_lshr_b32 s5, s2, 3', 's_and_b32 s6, s2, 7', 's_mov_b32 s83, 0x20000',
      f'v_min_u32 v16, 27, v{vLANE}', 'v_mul_u32_u24 v17, 9363, v16', 'v_lshrrev_b32 v17, 16, v17', f'v_mul_u32_u24 v17, {7168 - 896}, v17',
      'v_lshlrev_b32 v16, 7, v16', f'v_add_u32 v{vPG}, v16, v17',
      f's_mul_i32 s{sPG}, s5, {4 * 7168}', 's_mul_i32 s7, s6, 896', f's_add_u32 s{sPG}, s{sPG}, s7',
      f's_mov_b32 s{sPD}, {128 * 7168}', f's_mov_b32 s82, {1024 * 7168}',
      f's_cmp_eq_u32 s{sW}, 0', f's_cselect_b32 s80, s{sG}, s{sU}', f's_cselect_b32 s81, s{sG+1}, s{sU+1}',
      f's_cmp_lt_u32 s{sW}, 2', 's_cbranch_scc1 L_t9', f's_cmp_gt_u32 s{sW}, 2', 's_cbranch_scc1 L_t3',
      f'v_min_u32 v17, 23, v{vLANE}', 'v_mul_u32_u24 v18, 10923, v17', 'v_lshrrev_b32 v18, 16, v18',
      'v_mul_u32_u24 v18, 6, v18', 'v_sub_u32 v18, v17, v18', 'v_sub_u32 v17, v17, v18', 'v_lshlrev_b32 v17, 10, v17',
      'v_and_b32 v16, 1, v18', 'v_lshl_add_u32 v17, v16, 7, v17', 'v_lshrrev_b32 v18, 1, v18', f'v_lshl_add_u32 v{vPG}, v18, 11, v17',
      f's_mul_i32 s{sPG}, s5, {4 * 6144}', 's_lshl_b32 s7, s6, 8', f's_add_u32 s{sPG}, s{sPG}, s7',
      f's_mov_b32 s{sPD}, {128 * 6144}', f's_mov_b32 s82, {1024 * 6144}', f's_mov_b32 s80, s{sWQ}', f's_mov_b32 s81, s{sWQ+1}', 's_branch L_t9',
      'L_t3:', f'v_and_b32 v16, 31, v{vLANE}', f'v_lshlrev_b32 v{vPG}, 7, v16', f's_mul_i32 s{sPG}, s2, 28672', f's_movk_i32 s{sPD}, 4096', f's_mov_b32 s82, {3584 * 2048}',
      f's_mov_b32 s80, s{sWD}', f's_mov_b32 s81, s{sWD+1}', f's_cmp_eq_u32 s{sW}, 3', 's_cbranch_scc1 L_t9',
      f'v_min_u32 v{vPG}, 1152, v{vPG}', f's_lshl_b32 s{sPG}, s2, 13', f's_movk_i32 s{sPD}, 1280',
      f's_mov_b32 s80, s{sWO}', f's_mov_b32 s81, s{sWO+1}', f's_cmp_eq_u32 s{sW}, 4', f's_cselect_b32 s82, {1024 * 2048}, 0',
      'L_t9:', 's_and_b32 s81, s81, 0xffff')
    if 'nopf1' in EXP: a(f's_cmp_lt_u32 s{sW}, 3', 's_cselect_b32 s82, 0, s82')
    if 'nopf2' in EXP: a(f's_cmp_gt_u32 s{sW}, 2', 's_cselect_b32 s82, 0, s82')
    a(f's_cmp_lt_u32 s{sW}, 3', f's_cselect_b32 s4, s{sPD}, 0', f's_add_u32 s{sPG}, s{sPG}, s4')
    a(f's_lshl_b32 s5, s{sWM}, 12', f'v_add_u32 v{vRX}, s5, v{vL16}')
    a(f'v_lshrrev_b32 v16, 2, v{vLANE}',
      f'v_and_b32 v17, 3, v{vLANE}', 'v_lshlrev_b32 v17, 3, v17',
      f'v_mul_u32_u24 v{vRG}, 224, v16', f'v_add3_u32 v{vRG}, v{vRG}, v17, s5' if False else f'v_add_u32 v{vRG}, v{vRG}, v17', f'v_add_u32 v{vRG}, {GU_BASE}, v{vRG}',
      'v_lshl_add_u32 v18, v16, 6, v17', f'v_add_u32 v{vWPR}, {WPHI_BASE}, v18',
      f'v_bfe_u32 v19, v{vLANE}, 4, 1', 'v_lshl_add_u32 v18, v19, 5, v18', f'v_add_u32 v{vRQ0}, {QKV_BASE}, v18', f'v_xor_b32 v{vRQ1}, 32, v{vRQ0}')
    a(f's_mul_i32 s5, s{sWM}, {PT_W}', f's_add_u32 s5, s5, {PT_BASE}',
      f'v_mul_u32_u24 v{vPTR}, {PT_ROW}, v16', f'v_add3_u32 v{vPTR}, v{vPTR}, v17, s5',
      f'v_and_b32 v18, 15, v{vLANE}', f'v_mul_u32_u24 v18, {PT_ROW}, v18', f'v_lshrrev_b32 v19, 4, v{vLANE}',
      'v_lshl_add_u32 v18, v19, 3, v18', f'v_add_u32 v{vPTW}, s5, v18')
    a(f's_and_b32 s{sSIDE}, s2, 1', 's_and_b32 s5, s2, 6', 's_lshl_b32 s5, s5, 1', 's_lshr_b32 s6, s2, 6', f's_add_u32 s{sM3}, s5, s6',
      f's_bfe_u32 s{sNT}, s2, 0x30003', f's_lshl_b32 s{sOWN}, s{sSIDE}, 1', f's_add_u32 s{sOWN}, s{sOWN}, s{sWN}')
    a(f'v_and_b32 v18, 15, v{vLANE}', 'v_lshlrev_b32 v20, 1, v19', 'v_xor_b32 v18, v18, v20', 'v_lshlrev_b32 v18, 4, v18', 'v_lshl_add_u32 v18, v19, 11, v18',
      f's_lshl_b32 s5, s{sW}, 14', f's_lshl_b32 s6, s{sNT}, 8', 's_add_u32 s5, s5, s6',
      f'v_add_u32 v{vDW}, s5, v18', f'v_xor_b32 v{vDW+1}, 0x80, v{vDW}', f'v_add_u32 v{vDW+1}, 7168, v{vDW+1}')
    a(f'v_add_u32 v{vDH}, s28, v{vL16}',
      f's_mul_i32 s{sWO3}, s{sSIDE}, {28 * 131072}', f's_mul_i32 s{sHO3}, s{sSIDE}, {28 * 16384}', f's_mul_i32 s5, s{sM3}, {ACT_MT}', f's_add_u32 s{sHO3}, s{sHO3}, s5', f's_mov_b32 s{sM03}, s28')
    a('v_and_b32 v18, 7, v16', f's_lshl_b32 s5, s{sOWN}, 1', 'v_xor_b32 v18, s5, v18', 'v_lshl_add_u32 v18, v18, 5, v17',
      'v_lshl_add_u32 v18, v16, 8, v18', f's_lshl_b32 s5, s{sWN}, 13', f'v_add_u32 v{vR}, s5, v18')
    for n in range(1, 8): a(f'v_xor_b32 v{vR+n}, {n * 32}, v{vR}')
    a(f'v_and_b32 v18, 15, v{vLANE}', 'v_lshlrev_b32 v18, 11, v18', f'v_bfe_u32 v19, v{vLANE}, 4, 1', 'v_lshl_add_u32 v18, v19, 5, v18',
      f'v_lshrrev_b32 v19, 5, v{vLANE}', f'v_lshl_add_u32 v{vX}, v19, 4, v18',
      f's_lshl_b32 s5, s{sM3}, 18', f's_lshl_b32 s6, s{sWM}, 16', 's_add_u32 s5, s5, s6', f's_lshl_b32 s6, s{sNT}, 8', 's_add_u32 s5, s5, s6',
      f's_lshl_b32 s6, s{sOWN}, 6', f's_add_u32 s{sXO3}, s5, s6')
    a(f's_lshl_b32 s5, s{sM3}, 3', f's_add_u32 s5, s5, s{sNT}', 's_lshl_b32 s5, s5, 1', f's_add_u32 s5, s5, s{sSIDE}',
      's_lshl_b32 s6, s5, 14', f's_add_u32 s{sINB}, s6, s28',
      's_lshl_b32 s5, s5, 5', f's_lshl_b32 s6, s{sW}, 2', 's_add_u32 s5, s5, s6', f's_lshl_b32 s5, s5, {FS}', f's_add_u32 s{sPFO}, s5, {PFL}')
    a(f's_lshl_b32 s5, s{sW}, 12', f's_add_u32 s5, s5, {EXC_BASE}', f'v_add_u32 v{vEX}, s5, v{vL16}')
    a(f's_lshl_b32 s5, s{sMT}, 1', f's_lshr_b32 s6, s{sWM}, 1', 's_add_u32 s5, s5, s6',
      f's_mul_i32 s{sAB}, s5, {ACT_MT}', f's_and_b32 s7, s{sWM}, 1', 's_lshl_b32 s6, s7, 12', f's_add_u32 s{sAB}, s{sAB}, s6',
      's_lshl_b32 s5, s5, 12', f's_lshl_b32 s6, s{sJ}, 7', 's_add_u32 s5, s5, s6', 's_lshl_b32 s7, s7, 3', 's_add_u32 s5, s5, s7',
      f's_lshl_b32 s6, s{sWN}, 2', 's_add_u32 s5, s5, s6', f's_add_u32 s{sHFO}, s5, {HF}',
      f's_lshl_b32 s5, s{sM3}, 12', f's_lshl_b32 s6, s{sSIDE}, 11', 's_add_u32 s5, s5, s6', f's_add_u32 s{sHFP}, s5, {HF}',
      f's_mul_i32 s{sKVO}, s{sJ}, {8 * KV_PART}')
    c0 = -2.0 * 0.7978845608028654 * LOG2E
    a(f's_mov_b32 s{sL}, {hx(f2u(LOG2E))}', f's_mov_b32 s{sL+1}, {hx(f2u(LOG2E))}',
      f's_mov_b32 s{sC1}, {hx(f2u(c0 * 0.044715))}', f's_mov_b32 s{sC1+1}, {hx(f2u(c0 * 0.044715))}')
    return c0

def k2_dma(st, wn):
    slot = st & 3; tx = ('X', st); tw = ('W', st)
    x = [[f's_add_u32 m0, s28, {X_BASE + slot * X_ST}', ('vm', tx, f'buffer_load_dwordx4 v{vDX}, s[8:11], s{sXO} offen sc1 lds')],
         [('vm', tx, f'buffer_load_dwordx4 v{vDX}, s[8:11], s{sXO} offen offset:1024 sc1 lds'), f's_add_u32 s{sXO}, s{sXO}, 16384']]
    w = [[f's_add_u32 m0, s29, s{32+slot}', ('vm', tw, f'buffer_load_dwordx4 v{vD2}, s[12:15], s{sDO} offen lds')],
         [f's_add_u32 m0, s30, s{32+slot}', ('vm', tw, f'buffer_load_dwordx4 v{vD3}, s[16:19], s{sDO} offen lds'), f's_add_u32 s{sDO}, s{sDO}, s{sDS}']]
    if wn == 0:
        w.append([f's_add_u32 m0, s31, {slot * QKV_ST}', ('vm', tw, f'buffer_load_dwordx4 v{vD4}, s[20:23], s{sQO} offen lds'), f's_add_u32 s{sQO}, s{sQO}, {32 * 6144}'])
    return x, w

acc2 = lambda n, t: 96 + 16 * n + 4 * t
XS = [40, 56]; WR = 72; NR = 5; LK = 4
def k2_wread(wn, st, n):
    slot = st & 3; d = WR + 4 * ((st * 10 + n) % NR); r = []
    for p in range(2):
        if wn == 0 and n < 6: ad, off = [vRQ0, vRQ1][n & 1], slot * QKV_ST + (n >> 1) * 2048 + p * 1024
        else:
            q = n - 6 if wn == 0 else n + 4
            ad, off = vRG, slot * GU_ST + (q & 1) * UP_OFF + (q >> 1) * 32 + p * 3584
        r.append(('ld', ('w', st, n), f'ds_read_b64_tr_b16 v[{d+2*p}:{d+2*p+1}], v{ad} offset:{off}'))
    return r
def k2_xread(st, t):
    d = XS[st & 1] + 4 * t
    return ('ld', ('x', st, t), f'ds_read_b128 v[{d}:{d+3}], v{vRX} offset:{X_BASE + (st & 3) * X_ST + t * 1024}')

def k2_stage(e, wn, st, dq, hooks=()):
    dq = list(dq)
    for n in range(10):
        nn = n + LK; last = (st == 31)
        if nn == 10:
            e.wait(v=None if last else [('X', st + 1), ('W', st + 1)], l='all'); e('s_barrier'); e(*hooks)
        rd = k2_wread(wn, st + nn // 10, nn % 10) if not (last and nn >= 10) else [None, None]
        ex = k2_xread(st + 1, n - 6) if (n >= 6 and not last) else None
        A = WR + 4 * ((st * 10 + n) % NR)
        fill = [rd[0], rd[1], ex, None]
        for t in range(4):
            e.wait(l=[('w', st, n), ('x', st, t)])
            B = XS[st & 1] + 4 * t
            e(mfma(acc2(n, t), B, A) if (wn == 0 and n in (4, 5)) else mfma(acc2(n, t), A, B))
            if fill[t]: e.run([fill[t]])
        if n >= 6:
            k = (len(dq) + 9 - n) // (10 - n)
            for g in dq[:k]: e.run(g)
            dq = dq[k:]

def pack(d, s, n=2): return [f'v_cvt_pk_bf16_f32 v{d+i}, v{s+2*i}, v{s+2*i+1}' for i in range(n)]

PHI = 40; WP = 88; TS = 8
def phi_pair(e, QB, P, E, O):
    for t in range(2):
        for ft in range(2): e(mfma(P + 8 * t + 4 * ft, WP + 4 * ft, QB + 4 * t, 0))
    softmax2(e, P, E, TS, O)

def h_start(e, tag):
    e.wait(v=['hpoll']); e(*spin(tag, vL4, sHFP))
    for st in range(6):
        for g in k3_hld(st): e.run(g)

touch = [('vm', 'touch', f'buffer_load_dword v{vDUM}, v{vPG}, s[80:83], s{sPG} offen'), f's_add_u32 s{sPG}, s{sPG}, s{sPD}']
def k2_path(a, wn, c0):
    side = []
    e = Em(a)
    def wpro(e):
        for st in range(WPRE, 4):
            for g in k2_dma(st, wn)[1]: e.run(g)
        if wn == 1 and WPRE == 0:
            srd(e.a, 76, sPHI, 65536)
            e(f's_and_b32 s3, s{sW}, 1', 's_lshl_b32 s3, s3, 10', f's_lshl_b32 s4, s{sJ}, 11', 's_add_u32 s4, s4, s3', f's_add_u32 m0, s3, {WPHI_BASE}')
            e.vm('phi', f'buffer_load_dwordx4 v{vL16}, s[76:79], s4 offen lds')
        entry_touch(e.a, 1); e.q['v'].append('t0')
    p = Em(Asm())
    p(f'L_poll{wn}:', *flag_store(5), poll_load(vL4H, 6), 's_waitcnt vmcnt(0)', *spin(f'lnp{wn}', vL4H, 6), 's_barrier')
    if PROF: p(f'v_writelane_b32 v{vST}, s7, 32')
    p.stamp(15); wpro(p); p(f's_branch L_x{wn}')
    side += p.a.L
    e.q['v'] = [('W', 0), ('W', 1)]; e.done['v'] = 2
    e(f's_cmp_eq_u32 s{sW}, s{sMT}', f's_cbranch_scc1 L_poll{wn}')
    wpro(e); e('s_barrier'); e.stamp(15); e(f'L_x{wn}:')
    for st in range(4):
        for g in k2_dma(st, wn)[0]: e.run(g)
    e(f's_mov_b32 s{sCNT}, 0')
    e.wait(v=[('X', 2)]); e('s_barrier')
    e.stamp(3)
    for n in range(4): e.run(k2_wread(wn, 0, n) + [k2_xread(0, n)])
    bodies = []
    for it in range(7):
        b = Asm(); e.a = b
        for st in range(4 * it, 4 * it + 4):
            x, w = k2_dma(st + 4, wn)
            k2_stage(e, wn, st, x + w + ([touch] if st % 4 == TST else []))
        bodies.append(b.L)
    assert all(b == bodies[2] for b in bodies[2:])
    bodies[1] = bodies[2]
    body = bodies[1] + [f's_add_u32 s{sCNT}, s{sCNT}, 1', f's_cmp_lt_u32 s{sCNT}, 7', f's_cbranch_scc1 L_loop{wn}']
    check_loop([x for x in body if not x.endswith(':')])
    e.a = a
    a(f'L_loop{wn}:', *body)
    srd(a, 12, sWD, 3584 * 2048)
    for st in range(28, 32):
        dq = k3_wdma(st - 28) + (k3_wdma(4) + k3_wdma(5) if st == 31 else [])
        k2_stage(e, wn, st, dq)
    e.stamp(4)
    srd(a, 8, sWS, 16 * ACT_MT, ACT_OFF)
    vC0 = 4
    a(f'v_mov_b32 v{vC0}, {hx(f2u(c0))}', f'v_mov_b32 v{vC0+1}, {hx(f2u(c0))}',
      f's_mul_i32 s5, s{sJ}, 7', 's_add_u32 s5, s5, 1', 's_lshr_b32 s5, s5, 1', 's_lshl_b32 s5, s5, 13', f's_add_u32 s3, s5, s{sAB}')
    a(f's_lshl_b32 s5, s{sWM}, 11', f's_add_u32 s5, s5, {QX_BASE}', f'v_add_u32 v6, s5, v{vL16}')
    for ft in range(2):
        for p in range(2):
            e.ld('wp', f'ds_read_b64_tr_b16 v[{WP+4*ft+2*p}:{WP+4*ft+2*p+1}], v{vWPR} offset:{p * 1024 + ft * 32}')
    def hstore(O, so, off): e.vm('h', f'buffer_store_dwordx4 v[{O}:{O+3}], v{vL16}, s[8:11], s{so} offen offset:{off} sc1')
    if wn == 0:
        for t in range(4):
            geglu(a, acc2(6, t), acc2(7, t), acc2(8, t), acc2(9, t), TS, 40 + 4 * t, vC0); hstore(40 + 4 * t, 3, t * 1024)
        KB = 56; VB = 72; QB = 240
        for t in range(4): a(*pack(KB + 4 * t, acc2(2, t)), *pack(KB + 4 * t + 2, acc2(3, t)))
        for t in range(4): a(*pack(QB + 4 * t, acc2(0, t)), *pack(QB + 4 * t + 2, acc2(1, t)))
        for t in range(2): e.ld('qx', f'ds_write_b128 v6, v[{QB+8+4*t}:{QB+8+4*t+3}] offset:{t * 1024}')
        e.wait(l=['wp'])
        for t in range(4):
            for ft in range(2): a(mfma(96 + 8 * t + 4 * ft, WP + 4 * ft, KB + 4 * t, 0))
        for dt in range(2):
            for t in range(4): a(*pack(VB + 8 * dt + 2 * t, acc2(4 + dt, t)))
        a(*[f'v_mov_b32 v{16+i}, 0x3f803f80' for i in range(4)])
        AF = lambda kg, ft: 128 + 16 * kg + 4 * ft; KVA = lambda dt, ft: 192 + 16 * dt + 4 * ft; ZA = lambda ft: 224 + 4 * ft
        for kg in range(2):
            softmax2(a, 96 + 16 * kg, 160, TS, 40)
            if kg == 0: e.wait(v=['h']); e.run(flag(sHFO))
            for t in range(2):
                for i in range(4):
                    e.ld('pt', f'ds_write_b64 v{vPTW}, v[{40+8*t+2*i}:{41+8*t+2*i}] offset:{(2 * kg + t) * 16 * PT_ROW + i * 32}')
            for ft in range(4):
                for p in range(2):
                    d = AF(kg, ft) + 2 * p
                    e.ld(('af', kg, ft), f'ds_read_b64_tr_b16 v[{d}:{d+1}], v{vPTR} offset:{(32 * kg + 16 * p) * PT_ROW + ft * 32}')
        a(f's_mul_i32 s5, s{sWM}, {PT_W}', f's_add_u32 s5, s5, {PT_BASE}', f'v_add_u32 v7, s5, v{vL16}',
          f'v_lshrrev_b32 v5, 4, v{vLANE}', 'v_lshlrev_b32 v5, 4, v5', 'v_add_u32 v5, s5, v5')
        e.vm('hpoll', poll_load(vL4, sHFP))
        for kg in range(2):
            for ft in range(4):
                e.wait(l=[('af', kg, ft)])
                c = 0 if kg == 0 else None
                a(mfma(KVA(0, ft), AF(kg, ft), VB + 4 * kg, c), mfma(KVA(1, ft), AF(kg, ft), VB + 8 + 4 * kg, c), mfma(ZA(ft), AF(kg, ft), 16, c))
        for q in range(8): e.ld('kvp', f'ds_write_b128 v7, v[{192+4*q}:{195+4*q}] offset:{q * 1024}')
        a('s_mov_b32 exec_lo, 0x10001', 's_mov_b32 exec_hi, 0x10001')
        for ft in range(4): e.ld('kvp', f'ds_write_b128 v5, v[{ZA(ft)}:{ZA(ft)+3}] offset:{8192 + ft * 64}')
        a('s_mov_b64 exec, -1')
        e.wait(l='all'); a('s_barrier')
        e.stamp(5)
        a(f's_lshl_b32 s5, s2, 5', f's_lshl_b32 s6, s{sW}, 2', 's_add_u32 s5, s5, s6', f's_lshl_b32 s5, s5, {FS}', f's_add_u32 s{sCNT}, s5, {DUMF}')
        h_start(e, 'hp0')
        phi_pair(a, QB, 96, 112, PHI)
    else:
        a(f's_add_u32 s4, s3, 8192', f's_add_u32 s6, s3, 16384')
        k = 0
        for pr in range(2):
            for t in range(4):
                O = 40 + 4 * (k & 3); k += 1
                geglu(a, acc2(4 * pr, t), acc2(4 * pr + 1, t), acc2(4 * pr + 2, t), acc2(4 * pr + 3, t), TS, O, vC0); hstore(O, [4, 6][pr], t * 1024)
        a(f's_add_u32 s4, s3, {3 * 8192}', f's_sub_u32 s6, s3, {8192 - 1024}', f's_bitcmp1_b32 s{sJ}, 0', 's_cselect_b32 s4, s6, s4')
        for t in (0, 2):
            O = 40 + 4 * (k & 3); k += 1
            geglu(a, acc2(8, t), acc2(9, t), acc2(8, t + 1), acc2(9, t + 1), TS, O, vC0); hstore(O, 4, t * 1024)
        a(f's_lshl_b32 s5, s{sWM}, 11', f's_add_u32 s6, s5, {PT_BASE}', f'v_add_u32 v7, s6, v{vL16}',
          f's_lshl_b32 s6, s{sWM}, 6', f's_add_u32 s7, s6, {PT_BASE + 8192}', f'v_lshlrev_b32 v4, 2, v{vLANE}', 'v_add_u32 v5, s7, v4',
          f's_mul_i32 s4, s{sMT}, {KV_PART}', f's_add_u32 s4, s4, s{sKVO}', 's_add_u32 s3, s4, s5', 's_add_u32 s4, s4, s6', 's_add_u32 s4, s4, 8192',
          f's_lshl_b32 s5, s{sJ}, 10', f's_lshl_b32 s6, s{sMT}, 7', 's_add_u32 s5, s5, s6', f's_lshl_b32 s6, s{sWM}, 2', 's_add_u32 s5, s5, s6',
          f's_add_u32 s{sCNT}, s5, {KVF_}')
        e.wait(v=['h']); e.run(flag(sHFO))
        e.vm('hpoll', poll_load(vL4, sHFP))
        a('s_barrier')
        e.stamp(5)
        QB = 240; R = 192
        for q in range(2):
            for p in range(4): e.ld('kvr', f'ds_read_b128 v[{R+16*q+4*p}:{R+16*q+4*p+3}], v7 offset:{p * PT_W + q * 1024}')
        for p in range(4): e.ld('kvr', f'ds_read_b32 v{224+p}, v5 offset:{p * PT_W}')
        for t in range(2): e.ld('qx', f'ds_read_b128 v[{QB+4*t}:{QB+4*t+3}], v6 offset:{t * 1024}')
        e.wait(l=['kvr'])
        for q in range(2):
            b = R + 16 * q
            for i in (0, 2):
                a(f'v_pk_add_f32 v[{b+i}:{b+i+1}], v[{b+i}:{b+i+1}], v[{b+4+i}:{b+5+i}]', f'v_pk_add_f32 v[{b+8+i}:{b+9+i}], v[{b+8+i}:{b+9+i}], v[{b+12+i}:{b+13+i}]')
            for i in (0, 2): a(f'v_pk_add_f32 v[{b+i}:{b+i+1}], v[{b+i}:{b+i+1}], v[{b+8+i}:{b+9+i}]')
            e.vm('kvs', f'buffer_store_dwordx4 v[{b}:{b+3}], v{vL16}, s[24:27], s3 offen offset:{q * 1024} sc1')
        a('v_pk_add_f32 v[224:225], v[224:225], v[226:227]', 'v_add_f32 v224, v224, v225', 's_mov_b64 exec, 0xffff')
        e.vm('kvs', f'buffer_store_dword v224, v4, s[24:27], s4 offen sc1')
        a('s_mov_b64 exec, -1')
        h_start(e, 'hp1')
        e.wait(l='all')
        phi_pair(a, QB, 96, 112, PHI)
    return side

def k3(a):
    e = Em(a)
    for st in range(6): e.q['v'] += [('W3', st)] * 2
    for st in range(6): e.q['v'] += [('H', st)] * 2
    acc = lambda n, tau: 192 + n * 8 + tau * 4
    NS = 36; DIST = 6; S2 = 28 - DIST
    hi = [0] * 8; first = [True] * 8
    fi = [0]
    def frag(st, n):
        d = 96 + 4 * (fi[0] & 7); tag = ('f', fi[0]); fi[0] += 1
        slot = st & 7; pre = []
        if hi[n] != slot >> 2: pre = [f'v_xor_b32 v{vR+n}, 0x10000, v{vR+n}']; hi[n] ^= 1
        rd = [('ld', tag, f'ds_read_b64_tr_b16 v[{d+2*p}:{d+2*p+1}], v{vR+n} offset:{(slot & 3) * 16384 + p * 4096}') for p in range(2)]
        mm = [mfma(acc(n, tau), d, H3(st, tau), 0 if first[n] else None) for tau in range(2)]; first[n] = False
        return tag, [pre + rd[:1], rd[1:]], mm
    def phase(prev, cur, extra=()):
        extra = list(extra)
        for j in range(max(len(prev), len(cur))):
            if j < len(prev): e.wait(l=[prev[j][0]]); e(prev[j][2][0])
            if j < len(cur): e.run(cur[j][1][0])
            if j < len(prev): e(prev[j][2][1])
            if j < len(cur): e.run(cur[j][1][1])
            if extra: e.run(extra.pop(0))
        for x in extra: e.run(x)
    ev = {}
    def put(st, g, items): ev.setdefault(st, [[] for _ in range(8)])[g].extend(items)
    KV = 56; ZR = 88
    put(0, 0, flag(sCNT))
    put(0, 1, [f's_lshl_b32 s3, s{sJ}, 10', f's_add_u32 s3, s3, {KVF_}', f'v_and_b32 v{vL4H}, 1023, v{vL4}',
               f's_lshl_b32 s5, s{sW}, 10', f's_add_u32 s4, s5, s{sKVO}', f's_lshl_b32 s5, s{sW}, 5', f's_add_u32 s6, s5, s{sKVO}', 's_add_u32 s6, s6, 8192',
               f'v_lshrrev_b32 v12, 3, v{vLANE}', f'v_mul_u32_u24 v12, {KV_PART}, v12', f'v_and_b32 v13, 7, v{vLANE}', 'v_lshl_add_u32 v12, v13, 2, v12'])
    put(0, 3, [f's_lshr_b32 s5, s{sW}, 1', 's_lshl_b32 s5, s5, 10', f's_and_b32 s7, s{sW}, 1', 's_lshl_b32 s7, s7, 3', 's_add_u32 s5, s5, s7',
               f's_add_u32 s5, s5, {EXC_BASE}', f'v_add_u32 v13, s5, v{vL16}', f'v_add_u32 v15, {EXC_BASE}, v{vL16}'])
    put(0, 5, [f's_lshl_b32 s5, s{sWN}, 6', 's_lshl_b32 s7, s7, 2', 's_add_u32 s5, s5, s7', f's_and_b32 s7, s{sW}, 2', 's_lshl_b32 s7, s7, 2', 's_add_u32 s5, s5, s7',
               f's_add_u32 s5, s5, {ZB}', f'v_and_b32 v14, 3, v{vLANE}', f'v_and_b32 v16, 4, v{vLANE}', 'v_lshlrev_b32 v14, 1, v14', 'v_lshl_add_u32 v14, v16, 2, v14',
               'v_add_u32 v14, s5, v14'])
    put(0, 7, [f'v_lshrrev_b32 v16, 4, v{vLANE}', 'v_lshlrev_b32 v16, 4, v16', f'v_add_u32 v16, {ZB}, v16'])
    put(KP, 7, [('vm', 'kpoll', poll_load(vL4H, 3))])
    put(KC, 7, [('wv', ['kpoll'])] + spin('kp', vL4H, 3))
    for m in range(8):
        put(KC + 1, m, [('vm', 'kv', f'buffer_load_dwordx4 v[{KV+4*m}:{KV+4*m+3}], v{vL16}, s[24:27], s4 offen sc1'), f's_add_u32 s4, s4, {KV_PART}'])
    put(KC + 1, 7, [('vm', 'kv', f'buffer_load_dword v{ZR}, v12, s[24:27], s6 offen sc1')])
    K1 = KC + 1 + KWD
    pa = lambda d, s: [f'v_add_f32 v{d+i}, v{d+i}, v{s+i}' for i in range(4)]
    put(K1, 0, [('wv', ['kv'])] + pa(KV, KV + 4) + [f'v_add_f32_dpp v{ZR}, v{ZR}, v{ZR} row_ror:8 row_mask:0xf bank_mask:0xf'])
    put(K1, 1, pa(KV + 8, KV + 12) + [f'v_mov_b32 v{ZR+1}, v{ZR}'])
    put(K1, 2, pa(KV + 16, KV + 20) + [f'v_permlane16_swap_b32 v{ZR}, v{ZR+1}'])
    put(K1, 3, pa(KV + 24, KV + 28) + [f'v_add_f32 v{ZR}, v{ZR}, v{ZR+1}'])
    put(K1, 4, pa(KV, KV + 8) + [f'v_mov_b32 v{ZR+1}, v{ZR}'])
    put(K1, 5, pa(KV + 16, KV + 24) + [f'v_permlane32_swap_b32 v{ZR}, v{ZR+1}'])
    put(K1, 6, pa(KV, KV + 16) + [f'v_add_f32 v{ZR}, v{ZR}, v{ZR+1}'])
    put(K1, 7, pack(KV, KV) + [f'v_cvt_pk_bf16_f32 v{ZR}, v{ZR}, v{ZR}', ('ld', 'kw', f'ds_write_b64 v13, v[{KV}:{KV+1}]'), ('ld', 'kw', f'ds_write_b16 v14, v{ZR}')])
    pre = {K1 + 1: [('wl', ['kw'])]}
    AFR = 56; ZF = 72; NUM = lambda tau, dt: 80 + 8 * tau + 4 * dt; DEN = lambda tau: 4 + 4 * tau
    for s in range(2): put(K1 + 1, s, [('ld', 'kf', f'ds_read_b128 v[{ZF+4*s}:{ZF+4*s+3}], v16 offset:{s * 64}')])
    for f in range(4): put(K1 + 1, 2 + f, [('ld', 'kf', f'ds_read_b128 v[{AFR+4*f}:{AFR+4*f+3}], v15 offset:{f * 1024}')])
    put(K1 + 2, 0, [('wl', ['kf'])])
    for s in range(2):
        put(K1 + 2, s, [mfma(DEN(tau), ZF + 4 * s, PHI + 8 * tau + 4 * s, 0 if s == 0 else None) for tau in range(2)])
        for dt in range(2):
            put(K1 + 2, 2 + 2 * s + dt, [mfma(NUM(tau, dt), AFR + 8 * dt + 4 * s, PHI + 8 * tau + 4 * s, 0 if s == 0 else None) for tau in range(2)])
    put(K1 + 2, 4, [f'v_add_f32 v{DEN(tau)}, {hx(f2u(1e-6))}, v{DEN(tau)}' for tau in range(2)])
    put(K1 + 2, 5, [f'v_rcp_f32 v{DEN(tau)}, v{DEN(tau)}' for tau in range(2)])
    put(K1 + 2, 6, [f's_add_u32 s5, s{sJ}, 112', 's_lshl_b32 s5, s5, 13', f's_add_u32 s5, s5, s{sAB}', f's_lshl_b32 s6, s{sWN}, 11', 's_add_u32 s3, s5, s6',
                    f's_add_u32 s4, s{sHFO}, {OFD}'])
    for tau in range(2):
        for dt in range(2):
            put(K1 + 3, 2 * tau + dt, [f'v_mul_f32 v{NUM(tau,dt)+i}, v{NUM(tau,dt)+i}, v{DEN(tau)}' for i in range(4)])
        put(K1 + 3, 4 + tau, pack(AFR + 4 * tau, NUM(tau, 0), 4))
        put(K1 + 3, 6 + tau, [('vm', 'o', f'buffer_store_dwordx4 v[{AFR+4*tau}:{AFR+4*tau+3}], v{vL16}, s[8:11], s3 offen offset:{tau * 1024} sc1')])
    put(K1 + 3 + KFD, 7, [('wv', ['o'])] + flag(4))
    assert K1 + 3 + KFD < S2 - P2
    put(S2 - P2, 7, [f's_add_u32 s3, s{sHFP}, {OFD}', ('vm', 'opoll', poll_load(vL4, 3))])
    sw = Asm(); srd(sw, 12, sWO, 1024 * 2048)
    put(S2 - 1, 7, sw.L + [f's_lshl_b32 s{sWO3}, s{sSIDE}, 20', f's_mul_i32 s{sHO3}, s{sM3}, {ACT_MT}', f's_lshl_b32 s5, s{sSIDE}, 17',
                           f's_add_u32 s{sHO3}, s{sHO3}, s5', f's_add_u32 s{sHO3}, s{sHO3}, {112 * 8192}'])
    put(S2, 3, [('wv', ['opoll'])] + spin('op', vL4, 3))
    XR = 56; PK = 40; PT = 48; EX = 64; XU = 80
    sw = Asm(); srd(sw, 20, sX, 0x400000); srd(sw, 28, sWS, 0x400000, PART_OFF); srd(sw, 16, sOUT, 0x400000)
    put(S2 + 1, 7, sw.L + [f's_add_u32 s4, s{sXO3}, 0x8000', f's_xor_b32 s3, s{sINB}, 0x4000', f's_xor_b32 s6, s{sPFO}, {32 << FS}', f'v_xor_b32 v12, 0x4000, v{vEX}'])
    put(NS - 4, 1, [('vm', 'x', f'buffer_load_dwordx4 v[{XR}:{XR+3}], v{vX}, s[20:23], s{sXO3} offen')])
    put(NS - 4, 2, [('vm', 'x', f'buffer_load_dwordx4 v[{XR+4}:{XR+7}], v{vX}, s[20:23], s4 offen')])
    prev = []
    for s in range(NS):
        e.wait(v=[('W3', s), ('H', s)])
        if s < 28 and s % 7 in (1, 5):
            a(f's_cmp_eq_u32 s{sWN}, {1 if s % 7 == 1 else 0}', 's_cselect_b64 exec, -1, 0',
              f'v_swap_b32 v{H3(s,0)+2}, v{H3(s,1)}', f'v_swap_b32 v{H3(s,0)+3}, v{H3(s,1)+1}', 's_mov_b64 exec, -1')
        e.run(pre.get(s, []))
        a('s_barrier')
        if s == 0: e.stamp(6)
        if s == NS - DEFER: e.stamp(7)
        x = [[] for _ in range(8)]
        if s + DIST < NS:
            w = k3_wdma(s + DIST); h = k3_hld(s + DIST)
            if s < NS - DEFER: x[0] += w[0]; x[2] += w[1]; x[4] += h[0]; x[6] += h[1]
            else: x[0] += w[0]; x[1] += w[1]; x[2] += h[0]; x[3] += h[1]
        for g in range(8): x[g] = x[g] + ev.get(s, [[]] * 8)[g]
        if s < NS - DEFER:
            c0 = [frag(s, n) for n in range(4)]; phase(prev, c0, x[:4])
            c1 = [frag(s, n) for n in range(4, 8)]; phase(c0, c1, x[4:]); prev = c1
        else:
            c0 = [frag(s, n) for n in (6, 7, 4, 5)]; phase(prev, c0, x); prev = c0
    G = lambda i: [frag(NS - DEFER + i, n) for n in (2, 3, 0, 1)] if i < DEFER else []
    blk = lambda b: 192 + 16 * b
    wr = lambda b: [('ld', 'ew', f'ds_write_b128 v{vEX}, v[{blk(b)+4*j}:{blk(b)+4*j+3}] offset:{j * 1024}') for j in range(4)]
    rdx = [('ld', 'er', f'ds_read_b128 v[{EX+4*j}:{EX+4*j+3}], v12 offset:{j * 1024}') for j in range(4)]
    add = lambda b: [f'v_pk_add_f32 v[{blk(b)+2*j}:{blk(b)+2*j+1}], v[{blk(b)+2*j}:{blk(b)+2*j+1}], v[{EX+2*j}:{EX+2*j+1}]' for j in range(8)]
    g0 = G(0); phase(prev, g0)
    e.stamp(8)
    g1 = G(1); phase(g0, g1, [[w] for w in wr(3)])
    e.wait(l=['ew']); a('s_barrier'); e.run(rdx)
    g2 = G(2); phase(g1, g2)
    e.wait(l=['er']); a(*add(2)); a(*pack(PK, blk(2), 8))
    for j in range(2): e.vm('ps', f'buffer_store_dwordx4 v[{PK+4*j}:{PK+4*j+3}], v{vL16}, s[28:31], s3 offen offset:{j * 1024} sc1')
    prev = g2
    unp = lambda d, s: [f'v_lshlrev_b32 v{d}, 16, v{s}', f'v_and_b32 v{d+1}, 0xffff0000, v{s}']
    pollp = f'buffer_load_dword v{vPOLL}, off, s[24:27], s{sPFO} sc1'
    for i in range(3, DEFER + 1):
        x = [[], [], [], []]
        if i == 3: x = [[('wv', ['x'])] + unp(XU + 4 * j, XR + 2 * j) + unp(XU + 4 * j + 2, XR + 2 * j + 1) for j in range(4)]
        if i == FG: x[3] = [('wv', ['ps'])] + flag(6)
        if i == PG: x[3] = x[3] + [('vm', 'ppoll', pollp)]
        g = G(i); phase(prev, g, x); prev = g
    a('s_barrier'); e.run(wr(1))
    e.stamp(9)
    e.wait(v=['ppoll'])
    a('s_mov_b32 s7, 0', 'L_pp:', f'v_cmp_ne_u32 vcc, s{sNON}, v{vPOLL}', 's_cmp_eq_u64 vcc, 0', 's_cbranch_scc1 L_pp_ok',
      's_add_u32 s7, s7, 1', f's_cmp_ge_u32 s7, {hx(SPIN)}', 's_cbranch_scc1 L_pp_ok', pollp, 's_waitcnt vmcnt(0)', 's_branch L_pp', 'L_pp_ok:')
    for j in range(2): e.vm('pl', f'buffer_load_dwordx4 v[{PT+4*j}:{PT+4*j+3}], v{vL16}, s[28:31], s{sINB} offen offset:{j * 1024} sc1')
    e.wait(l='all'); a('s_barrier'); e.run(rdx)
    e.stamp(10)
    e.wait(l='all'); a(*add(0))
    e.wait(v=['pl'])
    for j in range(8): a(*unp(EX + 2 * j, PT + j))
    a(*add(0))
    for tau in range(2):
        lo = acc(0, tau); hh = acc(1, tau); r = XU + 8 * tau; o = XR + 4 * tau
        for i in range(4): a(f'v_permlane16_swap_b32 v{lo+i}, v{hh+i}')
        for i in range(2):
            a(f'v_pk_add_f32 v[{lo+2*i}:{lo+2*i+1}], v[{lo+2*i}:{lo+2*i+1}], v[{r+2*i}:{r+2*i+1}]',
              f'v_pk_add_f32 v[{hh+2*i}:{hh+2*i+1}], v[{hh+2*i}:{hh+2*i+1}], v[{r+4+2*i}:{r+5+2*i}]')
        a(*pack(o, lo), *pack(o + 2, hh))
        a(f'buffer_store_dwordx4 v[{o}:{o+3}], v{vX}, s[16:19], s{[sXO3, 4][tau]} offen')
    a(f's_or_b32 s5, s2, s{sW}', 's_cbranch_scc1 L_fin', f's_mov_b32 s5, {FL}', *flag_store(5), 'L_fin:')

def kernel():
    a = Asm(); kn = NAME + '_kernel'
    a('.text', f'.globl {kn}', '.p2align 8', f'.type {kn},@function', f'{kn}:')
    entry(a)
    e = Em(a)
    if WPRE:
        if 'nob0' not in EXP: a('s_barrier')
        for st in range(2):
            w = k2_dma(st, 0)[1]
            e.run(w[0] + w[1])
        a(f's_cmp_lg_u32 s{sWN}, 0', 's_cbranch_scc1 L_e1')
        for st in range(2): e.run(k2_dma(st, 0)[1][2])
        a('s_branch L_e2', 'L_e1:')
        srd(a, 76, sPHI, 65536)
        a(f's_lshl_b32 s6, s{sJ}, 11', f's_mov_b32 m0, {WPHI_BASE}', f'buffer_load_dwordx4 v{vL16}, s[76:79], s6 offen lds',
          f'buffer_load_dwordx4 v{vL16}, s[76:79], s6 offen offset:1024 lds')
        a('L_e2:')
    c0 = setup(a)
    NT0 = 3 * WPRE
    layernorm(a, 1 + NT0)
    stamp(a, 12)
    srd(a, 8, sWS, 0x400000, XN_OFF)
    a('s_lshr_b32 s5, s2, 5', 's_lshl_b32 s5, s5, 19', 's_bfe_u32 s6, s2, 0x40001', 's_lshl_b32 s6, s6, 10', 's_add_u32 s5, s5, s6',
      's_and_b32 s6, s2, 1', 's_lshl_b32 s6, s6, 7', 's_add_u32 s5, s5, s6', 's_add_u32 s6, s5, 0x8000')
    a('buffer_store_dwordx4 v[96:99], v137, s[8:11], s5 offen sc1', 'buffer_store_dwordx4 v[100:103], v137, s[8:11], s6 offen sc1')
    a('s_mov_b32 s5, 0x9E3779B1', f's_waitcnt vmcnt({2 + NT0})', f'v_mul_lo_u32 v{vNON}, v{vNON}, s5', f'v_add_u32 v{vNON}, 0x7F4A7C15, v{vNON}', f'v_readfirstlane_b32 s{sNON}, v{vNON}')
    a(f's_lshl_b32 s5, s2, {2 + FS}', f's_add_u32 s5, s5, {LNF}', f's_lshl_b32 s6, s{sMT}, {7 + FS}', f's_add_u32 s6, s6, {LNF}')
    for r in list(range(104, 137)) + list(range(138, 256)) + [137] + list(range(96, 104)): a(f'v_mov_b32 v{r}, 0')
    stamp(a, 13); a('s_waitcnt vmcnt(0)'); stamp(a, 14); a('s_barrier'); stamp(a, 2)
    a(f's_cmp_lg_u32 s{sWN}, 0', 's_cbranch_scc1 L_wn1')
    side = k2_path(a, 0, c0)
    a('s_branch L_k3', 'L_wn1:')
    side += k2_path(a, 1, c0)
    a('s_nop 7', 'L_k3:')
    k3(a)
    if PROF:
        a('s_waitcnt vmcnt(0)'); stamp(a, 11)
        srd(a, 96, sWS, 0x100000, PROF_OFF)
        a('s_lshl_b32 s100, s2, 11', f's_lshl_b32 s101, s{sW}, 8', 's_add_u32 s100, s100, s101', f'v_lshlrev_b32 v4, 2, v{vLANE}', f'buffer_store_dword v{vST}, v4, s[96:99], s100 offen')
    a('L_done:', 's_endpgm', *side)
    desc = f'''.section .rodata,"a"
.p2align 6
.amdhsa_kernel {kn}
  .amdhsa_next_free_vgpr 256
  .amdhsa_next_free_sgpr 102
  .amdhsa_accum_offset 256
  .amdhsa_group_segment_fixed_size 0
  .amdhsa_kernarg_size 88
  .amdhsa_user_sgpr_count 2
  .amdhsa_user_sgpr_kernarg_segment_ptr 1
  .amdhsa_system_sgpr_workgroup_id_x 1
.end_amdhsa_kernel
'''
    return a.finish(report=bool(env('REPORT', 0))) + desc

def main(out):
    hdr = open('cdna_kernels/%s.s.ref' % NAME).read().split('\n')
    top = [l for l in hdr if l.startswith(';') and '@launch' not in l and 'Override launch' not in l and 'grid=ceil' not in l]
    top += ['; Generated by gen/gen_f.py (hand-written generator; no compiler output).',
            f'; @launch grid=(256,1,1) block=(512,1,1) lds={LDS}', '.amdgcn_target "amdgcn-amd-amdhsa--gfx950"']
    open(out, 'w').write('\n'.join(top) + '\n' + kernel())

if __name__ == '__main__':
    main(sys.argv[1] if len(sys.argv) > 1 else 'cdna_kernels/%s.s' % NAME)
```
